```python
import torch

def _softmax(x, axis=-1):
    return torch.softmax(x, dim=axis)
def _gelu(x):
    return torch.nn.functional.gelu(x, approximate="tanh")
def _silu(x):
    return torch.nn.functional.silu(x)
def _sigmoid(x):
    return torch.sigmoid(x)
def _layernorm(x, axis=-1, eps=1e-5):
    m = x.mean(dim=axis, keepdim=True)
    v = x.var(dim=axis, keepdim=True, unbiased=False)
    return (x - m) / torch.sqrt(v + eps)
def _scatter_add(tgt, idx, src, axis=0):
    return tgt.clone().index_add_(axis, idx, src)
def _segment_sum(src, seg, n):
    out = torch.zeros((n,) + src.shape[1:], dtype=src.dtype)
    return out.index_add_(0, seg, src)
def _pad(x, pw):
    flat = tuple(v for pair in reversed(pw) for v in pair)
    return torch.nn.functional.pad(x, flat)

kernel_name = 'interleave_layers__ssm_conv_h3__linear_kernel_hedgehog__prompt'

def setup_inputs():

    _w = (lambda a: (lambda t: t.to(torch.bfloat16) if t.is_floating_point() else t)(torch.as_tensor(a)))
    def _A_setup():
        B, S, D = 1, 2048, 512
        ks = 4
        return {
            "q": _w((lambda *s: torch.randn(*s, dtype=torch.bfloat16) * 0.05)(B, S, D)),
            "k": _w((lambda *s: torch.randn(*s, dtype=torch.bfloat16) * 0.8)(B, S, D)),
            "v": _w((lambda *s: torch.randn(*s, dtype=torch.bfloat16) * 0.8)(B, S, D)),
            "shift_k": _w((lambda *s: torch.randn(*s, dtype=torch.bfloat16) * 0.8)(D, ks) * 0.5),
            "ssm_k": _w((lambda *s: torch.randn(*s, dtype=torch.bfloat16) * 0.8)(D, S) * (1.0 / S ** 0.5)),
            "ssm_D": _w((lambda *s: torch.randn(*s, dtype=torch.bfloat16) * 0.8)(D)),
        }
    _A_in = _A_setup()

    def _B_setup():
        B, S, D, H = 1, 2048, 512, 32
        Dh = D // H
        return {
            "x": _w((lambda *s: torch.randn(*s, dtype=torch.bfloat16) * 0.05)(B, S, D)),
            "wqkv": _w((lambda *s: torch.randn(*s, dtype=torch.bfloat16) * 0.4)(D, 3 * D)),
            "w_phi": _w((lambda *s: torch.randn(*s, dtype=torch.bfloat16) * 0.4)(H, Dh, Dh) * (Dh ** -0.5)),
            "wo": _w((lambda *s: torch.randn(*s, dtype=torch.bfloat16) * 0.2)(D, D)),
        }
    _B_in = _B_setup()

    return {
        "A_q": _A_in["q"],
        "A_k": _A_in["k"],
        "A_v": _A_in["v"],
        "A_shift_k": _A_in["shift_k"],
        "A_ssm_k": _A_in["ssm_k"],
        "A_ssm_D": _A_in["ssm_D"],
        "B_x": _B_in["x"],
        "B_wqkv": _B_in["wqkv"],
        "B_w_phi": _B_in["w_phi"],
        "B_wo": _B_in["wo"],
    }

def reference(A_q, A_k, A_v, A_shift_k, A_ssm_k, A_ssm_D, B_x, B_wqkv, B_w_phi, B_wo):
    def _A_ref(q, k, v, shift_k, ssm_k, ssm_D):
        B, S, D = q.shape
        ks = shift_k.shape[-1]
        k_pad = _pad(k, ((0, 0), (ks - 1, 0), (0, 0)))
        k_shift = torch.zeros_like(k)
        for t in range(ks):
            k_shift = k_shift + k_pad[:, t:t + S, :] * shift_k[:, ks - 1 - t][None, None, :]
        kv = k_shift * v
        L = 2 * S
        kv_pad = _pad(kv, ((0, 0), (0, S), (0, 0)))
        kf_pad = _pad(ssm_k, ((0, 0), (0, S)))
        kv_f = (lambda x, axes=(-2,-1): torch.fft.rfft2(x.float(), dim=axes))(kv_pad[:, None, :, :], axes=(1, 2))
        kf_f = (lambda x, axes=(-2,-1): torch.fft.rfft2(x.float(), dim=axes))(kf_pad[:, None, :], axes=(1, 2))
        kf_f = (lambda x, *d: x.permute(*d))(kf_f, 1, 2, 0)
        y_f = kv_f * kf_f[None, :, :, :]
        y = (lambda x, s, axes=(-2,-1): torch.fft.irfft2(x, s=s, dim=axes).to(torch.bfloat16))(y_f, (1, L), axes=(1, 2))[:, 0, :S, :]
        y = y + kv * ssm_D[None, None, :]
        return q * y

    def _B_ref(x, wqkv, w_phi, wo):
        B, S, D = x.shape
        H = 32; Dh = D // H
        qkv = (lambda x, *d: x.permute(*d))((x @ wqkv).reshape(B, S, 3, H, Dh), 2, 0, 3, 1, 4)
        q, k, v = qkv[0], qkv[1], qkv[2]
        pq = torch.einsum("bhsd,hdf->bhsf", q, w_phi)
        pk = torch.einsum("bhsd,hdf->bhsf", k, w_phi)
        phi_q = torch.concatenate([_softmax(pq, axis=-1), _softmax(-pq, axis=-1)], axis=-1)
        phi_k = torch.concatenate([_softmax(pk, axis=-1), _softmax(-pk, axis=-1)], axis=-1)
        kv = torch.einsum("bhsf,bhsd->bhfd", phi_k, v)
        z  = torch.einsum("bhsf->bhf", phi_k)
        num = torch.einsum("bhqf,bhfd->bhqd", phi_q, kv)
        den = torch.einsum("bhqf,bhf->bhq", phi_q, z)[..., None] + 1e-6
        o = num / den
        return (lambda x, *d: x.permute(*d))(o, 0, 2, 1, 3).reshape(B, S, D) @ wo

    x = A_q
    x = x + _A_ref(_layernorm(x, axis=-1), A_k, A_v, A_shift_k, A_ssm_k, A_ssm_D)
    x = x + _B_ref(_layernorm(x, axis=-1), B_wqkv, B_w_phi, B_wo)
    x = x + _A_ref(_layernorm(x, axis=-1), A_k, A_v, A_shift_k, A_ssm_k, A_ssm_D)
    x = x + _B_ref(_layernorm(x, axis=-1), B_wqkv, B_w_phi, B_wo)
    return x
```

```python
import re
TRANS = ('v_exp_f32','v_log_f32','v_rcp_f32','v_rsq_f32','v_sqrt_f32','v_sin_f32','v_cos_f32')
def regs_of(tok):
    tok = tok.strip()
    tok = re.sub(r'^-|^abs\(|\)$|^\|', '', tok).strip('|')
    m = re.fullmatch(r'([vas])\[(\d+):(\d+)\]', tok)
    if m: return [(m.group(1), i) for i in range(int(m.group(2)), int(m.group(3))+1)]
    m = re.fullmatch(r'([vas])(\d+)', tok)
    if m: return [(m.group(1), int(m.group(2)))]
    if tok == 'vcc': return [('s', 106), ('s', 107)]
    if tok == 'exec': return [('s', 126), ('s', 127)]
    if tok == 'm0': return [('s', 124)]
    return []
def parse(line):
    line = line.split(';')[0].strip()
    if not line or line.endswith(':') or line.startswith('.'): return None
    p = line.split(None, 1)
    op = p[0]; rest = p[1] if len(p) > 1 else ''
    toks = [t.split()[0] if t.split() else '' for t in re.split(r',(?![^\[]*\])', rest)]
    ops = [regs_of(t) for t in toks]
    I = dict(op=op, w=[], r=[], line=line, srcc=[], ab=[], data=[])
    flat = lambda l: [x for y in l for x in y]
    if op.startswith('v_mfma'):
        I['k'] = 'mfma'; I['w'] = ops[0]; I['ab'] = ops[1]+ops[2]; I['srcc'] = ops[3]; I['r'] = flat(ops[1:])
        I['passes'] = 8 if '32x32x16' in op else 4
    elif op.startswith('buffer_load') or op.startswith('global_load'):
        I['k'] = 'vmem'
        if re.search(r'\blds\b', line): I['r'] = flat(ops)+[('s',124)]; I['ldsdma'] = 1
        else: I['w'] = ops[0]; I['r'] = flat(ops[1:])
    elif op.startswith('buffer_') or op.startswith('global_'):
        I['k'] = 'vmem'; I['r'] = flat(ops)
        if 'x4' in op or 'x3' in op: I['data'] = ops[0] if op.startswith('buffer') else ops[1]
    elif op.startswith('ds_read'):
        I['k'] = 'ds'; I['w'] = ops[0]; I['r'] = flat(ops[1:])
    elif op.startswith('ds_'):
        I['k'] = 'ds'; I['r'] = flat(ops)
    elif op.startswith('v_'):
        I['k'] = 'valu'
        if 'permlane' in op: I['w'] = flat(ops); I['r'] = flat(ops); I['perm'] = 1
        elif op.startswith('v_cmp'): I['w'] = ops[0]; I['r'] = flat(ops[1:])
        elif '_co_' in op: I['w'] = ops[0]+ops[1]; I['r'] = flat(ops[2:])
        else:
            I['w'] = ops[0]; I['r'] = flat(ops[1:])
            if 'fmac' in op or 'dot2c' in op: I['r'] = I['r']+ops[0]
        I['trans'] = op.replace('_e32','').replace('_e64','') in TRANS
        I['dot'] = 'dot2' in op
        I['dpp'] = 'dpp' in op
        I['rl'] = 'readfirstlane' in op or 'readlane' in op
    elif op.startswith('s_'):
        I['k'] = 'salu'
        if op == 's_nop': I['n'] = int(toks[0], 0)+1
        elif op.startswith('s_cmp') or op.startswith('s_cbranch') or op in ('s_waitcnt','s_barrier','s_branch','s_endpgm','s_setprio'): I['r'] = flat(ops)
        else: I['w'] = ops[0] if ops else []; I['r'] = flat(ops[1:])
        if 'saveexec' in op: I['w'] = I['w']+[('s',126),('s',127)]
    else: raise Exception('unknown '+line)
    return I
def need(P, C):
    n = 0
    pw = set(P['w']); cr = set(C['r']); cw = set(C['w'])
    if P['k'] == 'mfma':
        ps = P['passes']; big = {8:12, 4:8}[ps]
        if C['k'] == 'mfma':
            if pw & set(C['ab']): n = max(n, big)
            if pw & set(C['srcc']):
                if not (C['srcc'] == P['w'] and C['passes'] == ps): n = max(n, big-2)
            elif pw & cw: n = max(n, big)
        elif C['k'] in ('valu','vmem','ds'):
            if pw & (cr | cw): n = max(n, big)
            if C['k'] == 'valu' and set(P['srcc']) & cw: n = max(n, ps-1)
    elif P['k'] == 'valu':
        pv = {x for x in pw if x[0] != 's'}; psg = {x for x in pw if x[0] == 's'}
        if C['k'] == 'mfma' and pv & cr: n = max(n, 2)
        if C['k'] == 'mfma' and ('s',126) in psg: n = max(n, 4)
        if C['k'] == 'valu':
            if P['trans'] and not C['trans'] and pv & cr: n = max(n, 1)
            if (C.get('perm') or C['dpp']) and pv & cr: n = max(n, 2)
            if C['rl'] and pv & cr: n = max(n, 1)
            if psg & cr: n = max(n, 4 if C['rl'] else 2)
            if P['dot'] and pv & (cr | cw):
                if not (C['op'] == P['op'] and not (pv & set(C['r'][:2]) - set(C['w']))): n = max(n, 3)
            if 'sdwa' in P['op'] and pv & cr: n = max(n, 1)
        if C['k'] in ('vmem','ds') and P['dot'] and pv & cr: n = max(n, 3)
        if C['k'] == 'mfma' and P['dot'] and pv & cr: n = max(n, 3)
        if C['k'] == 'vmem' and psg & cr: n = max(n, 5)
    elif P['k'] == 'vmem':
        if set(P['data']) & cw: n = max(n, 2)
    elif P['k'] == 'salu':
        if ('s',124) in pw and C.get('ldsdma'): n = max(n, 1)
    return n
def fix_hazards(lines):
    out = []; hist = []
    for ln in lines:
        I = parse(ln)
        if I is None:
            out.append(ln); continue
        dist = 0; req = 0
        for P in reversed(hist):
            r = need(P, I) - dist
            req = max(req, r)
            dist += P.get('n', 1)
            if dist > 20: break
        while req > 0:
            k = min(req, 16)
            out.append(f'  s_nop {k-1}'); hist.append(dict(op='s_nop', k='salu', n=k, w=[], r=[], data=[])); req -= k
        if ';cond' in ln: I['n'] = 0
        out.append(ln); hist.append(I)
        hist = hist[-24:]
    return out
class A:
    def __init__(s): s.l = []
    def __call__(s, t):
        for x in t.strip().split('\n'): s.l.append('  '+x.strip() if not x.strip().endswith(':') else x.strip())
    def srd(s, d, b, n):
        s(f's_mov_b32 s{d}, s{b}\ns_and_b32 s{d+1}, s{b+1}, 0xffff\ns_mov_b32 s{d+2}, {n}\ns_mov_b32 s{d+3}, 0x20000')
def v(i, n=1): return f'v{i}' if n == 1 else f'v[{i}:{i+n-1}]'
def a(i, n=1): return f'a{i}' if n == 1 else f'a[{i}:{i+n-1}]'
```

```python
from asmlib import *
URT=0x0; X0T=0x200000; ST0=0x400000; WQP=0x500000; WSUM=0x680000; WOP=0x700000
YC=0x800000; X1C=0xA00000; X2C=0xC00000; X3C=0xE00000; PQ=0x1000000; STATE=0x1400000; ST2=0x1480000
WS_SZ=0x1500000; STATE_L=32*2176
def ws_srd(A_, d, tmp):
    A_(f's_load_dwordx2 s[{tmp}:{tmp+1}], s[0:1], 96')
def K0():
    e = A()
    e('''s_cmp_ge_u32 s2, 304
    s_cbranch_scc1 K0_end
    s_load_dwordx4 s[4:7], s[0:1], 0
    s_load_dwordx4 s[8:11], s[0:1], 16
    s_load_dwordx4 s[12:15], s[0:1], 56
    s_load_dwordx2 s[16:17], s[0:1], 72
    s_load_dwordx2 s[18:19], s[0:1], 96
    v_lshrrev_b32 v1, 6, v0
    v_and_b32 v2, 63, v0
    s_nop 0
    v_readfirstlane_b32 s3, v1
    s_waitcnt lgkmcnt(0)''')
    e.srd(20, 18, WS_SZ)
    e('''s_cmp_lt_u32 s2, 16
    s_cbranch_scc1 K0_pack
    s_cmp_lt_u32 s2, 48
    s_cbranch_scc1 K0_stats''')
    e.srd(24, 4, 0x200000)
    e.srd(28, 6, 0x200000)
    e.srd(32, 8, 0x200000)
    e.srd(36, 10, 4096)
    e(f'''s_sub_u32 s40, s2, 48
    s_lshr_b32 s41, s40, 3
    s_and_b32 s42, s40, 7
    v_lshrrev_b32 v3, 3, v0
    v_and_b32 v4, 7, v0
    s_lshl_b32 s43, s41, 16
    s_lshl_b32 s44, s42, 7
    s_add_u32 s43, s43, s44
    v_lshlrev_b32 v5, 11, v3
    v_lshl_add_u32 v5, v4, 4, v5
    v_add_u32 v5, s43, v5
    v_add_u32 v6, 0xfffff400, v5
    v_add_u32 v7, 0xfffff800, v5
    v_add_u32 v8, 0xfffffc00, v5
    s_lshl_b32 s45, s42, 9
    v_lshl_add_u32 v9, v4, 6, s45
    buffer_load_dwordx4 v[16:19], v6, s[28:31], 0 offen
    buffer_load_dwordx4 v[20:23], v7, s[28:31], 0 offen
    buffer_load_dwordx4 v[24:27], v8, s[28:31], 0 offen
    buffer_load_dwordx4 v[28:31], v5, s[28:31], 0 offen
    buffer_load_dwordx4 v[32:35], v5, s[28:31], 0 offen offset:1024
    buffer_load_dwordx4 v[36:39], v5, s[32:35], 0 offen
    buffer_load_dwordx4 v[40:43], v5, s[32:35], 0 offen offset:1024
    buffer_load_dwordx4 v[52:55], v9, s[36:39], 0 offen
    buffer_load_dwordx4 v[56:59], v9, s[36:39], 0 offen offset:16
    buffer_load_dwordx4 v[60:63], v9, s[36:39], 0 offen offset:32
    buffer_load_dwordx4 v[64:67], v9, s[36:39], 0 offen offset:48
    buffer_load_dwordx4 v[44:47], v5, s[24:27], 0 offen
    buffer_load_dwordx4 v[48:51], v5, s[24:27], 0 offen offset:1024
    s_add_u32 s48, s18, {STATE}
    s_addc_u32 s49, s19, 0''')
    e.srd(52, 48, 2*STATE_L)
    e(f'''s_lshl_b32 s46, s40, 10
    v_lshl_add_u32 v10, v0, 2, s46
    v_mov_b32 v11, 0
    buffer_store_dword v11, v10, s[52:55], 0 offen
    v_lshrrev_b32 v12, 2, v3
    v_xor_b32 v13, v12, v4
    v_lshlrev_b32 v13, 4, v13
    v_lshl_add_u32 v13, v4, 10, v13
    v_and_b32 v14, 3, v3
    v_lshl_add_u32 v15, v14, 2, v13
    v_xor_b32 v14, 0x7c, v15
    s_mov_b32 s50, 0x05040100
    s_mov_b32 s51, 0x07060302
    s_mov_b32 s47, 0xffff0000
    s_waitcnt vmcnt(3)''')
    for i in range(8):
        lo = (i % 2 == 0); d = i//2
        def up(dst, src):
            return f'v_lshlrev_b32 v{dst}, 16, v{src}' if lo else f'v_and_b32 v{dst}, s47, v{src}'
        for r in range(5): e(up(70+r, 16+4*r+d))
        e(up(75, 36+d)); e(up(76, 40+d))
        w = 52+2*i
        e(f'''v_lshlrev_b32 v77, 16, v{w}
        v_and_b32 v78, s47, v{w}
        v_lshlrev_b32 v79, 16, v{w+1}
        v_and_b32 v80, s47, v{w+1}
        v_mul_f32 v81, v70, v80
        v_mul_f32 v82, v71, v80
        v_fmac_f32 v81, v71, v79
        v_fmac_f32 v82, v72, v79
        v_fmac_f32 v81, v72, v78
        v_fmac_f32 v82, v73, v78
        v_fmac_f32 v81, v73, v77
        v_fmac_f32 v82, v74, v77
        v_mul_f32 v81, v81, v75
        v_mul_f32 v82, v82, v76
        v_cvt_pk_bf16_f32 v{84+i}, v82, v81
        ds_write_b32 v14, v{84+i} offset:{i*128}''')
    e('s_waitcnt vmcnt(1)')
    for i in range(8):
        e(f'v_perm_b32 v{92+i}, v{48+i//2}, v{44+i//2}, s{50+(i%2)}\nds_write_b32 v15, v{92+i} offset:{8192+i*128}')
    e(f'''v_lshrrev_b32 v12, 6, v0
    v_xor_b32 v12, v12, v4
    v_lshlrev_b32 v12, 4, v12
    v_lshl_add_u32 v12, v3, 7, v12
    v_xor_b32 v13, 64, v12
    s_lshl_b32 s43, s42, 18
    s_lshl_b32 s44, s41, 7
    s_add_u32 s45, s43, s44
    s_add_u32 s45, s45, {X0T}
    s_sub_u32 s43, s43, s44
    s_add_u32 s43, s43, {URT+3968}
    v_lshlrev_b32 v5, 12, v3
    v_lshl_add_u32 v5, v4, 4, v5
    v_add_u32 v6, 0x20000, v5
    s_waitcnt lgkmcnt(0)
    s_barrier
    ds_read_b128 v[16:19], v12
    ds_read_b128 v[20:23], v13 offset:4096
    ds_read_b128 v[24:27], v12 offset:8192
    ds_read_b128 v[28:31], v13 offset:12288
    s_waitcnt lgkmcnt(3)
    buffer_store_dwordx4 v[16:19], v5, s[20:23], s43 offen
    s_waitcnt lgkmcnt(2)
    buffer_store_dwordx4 v[20:23], v6, s[20:23], s43 offen
    s_waitcnt lgkmcnt(1)
    buffer_store_dwordx4 v[24:27], v5, s[20:23], s45 offen
    s_waitcnt lgkmcnt(0)
    buffer_store_dwordx4 v[28:31], v6, s[20:23], s45 offen
    s_endpgm''')
    e('K0_stats:')
    e.srd(24, 4, 0x200000)
    e('''s_sub_u32 s40, s2, 16
    s_lshl_b32 s40, s40, 6
    v_lshrrev_b32 v3, 2, v0
    v_add_u32 v3, s40, v3
    v_and_b32 v4, 3, v0
    v_lshlrev_b32 v5, 10, v3
    v_lshl_add_u32 v5, v4, 4, v5''')
    for i in range(16): e(f'buffer_load_dwordx4 v[{16+4*i}:{19+4*i}], v5, s[24:27], 0 offen offset:{64*i}')
    e('v_mov_b32 v6, 0\nv_mov_b32 v7, 0\ns_mov_b32 s41, 0x3f803f80')
    for i in range(16):
        e(f's_waitcnt vmcnt({15-i})')
        for j in range(4): e(f'v_dot2c_f32_bf16 v6, s41, v{16+4*i+j}\nv_dot2c_f32_bf16 v7, v{16+4*i+j}, v{16+4*i+j}')
    e(f'''v_add_f32_dpp v8, v6, v6 quad_perm:[1,0,3,2] row_mask:0xf bank_mask:0xf
    v_add_f32_dpp v9, v7, v7 quad_perm:[1,0,3,2] row_mask:0xf bank_mask:0xf
    v_add_f32_dpp v6, v8, v8 quad_perm:[2,3,0,1] row_mask:0xf bank_mask:0xf
    v_add_f32_dpp v7, v9, v9 quad_perm:[2,3,0,1] row_mask:0xf bank_mask:0xf
    v_mul_f32 v8, 0x3b000000, v6
    v_mul_f32 v7, 0x3b000000, v7
    v_fma_f32 v7, -v8, v8, v7
    v_max_f32 v7, 0, v7
    v_add_f32 v7, 0x3727c5ac, v7
    v_rsq_f32 v9, v7
    v_lshlrev_b32 v3, 3, v3
    s_mov_b32 s42, {ST0}
    buffer_store_dwordx2 v[8:9], v3, s[20:23], s42 offen
    s_endpgm''')
    e('K0_pack:')
    e.srd(24, 12, 512*3072)
    e.srd(28, 14, 16384)
    e(f'''s_lshl_b32 s40, s2, 2
    s_add_u32 s40, s40, s3
    v_and_b32 v3, 31, v0
    v_bfe_u32 v4, v0, 5, 1
    v_and_b32 v5, 0x13, v3
    v_and_b32 v6, 4, v3
    v_lshl_or_b32 v5, v6, 1, v5
    v_and_b32 v6, 8, v3
    v_lshrrev_b32 v6, 1, v6
    v_or_b32 v5, v5, v6
    s_cmp_lt_u32 s40, 48
    s_cbranch_scc1 K0_pq''')
    e.srd(24, 16, 512*1024)
    e(f'''s_sub_u32 s41, s40, 48
    s_lshl_b32 s42, s41, 6
    s_movk_i32 s43, 1024
    s_lshl_b32 s44, s41, 15
    s_add_u32 s44, s44, {WOP}
    s_movk_i32 s45, 1024
    s_mov_b32 s46, 2
    v_mov_b32 v5, v3
    s_mov_b32 s47, {WSUM+8192}
    s_branch K0_pgo
    K0_pq:
    s_lshr_b32 s46, s40, 4
    s_and_b32 s41, s40, 15
    s_lshl_b32 s42, s41, 6
    s_lshl_b32 s43, s46, 10
    s_add_u32 s42, s42, s43
    s_mul_i32 s44, s41, 98304
    s_add_u32 s44, s44, s43
    s_add_u32 s44, s44, {WQP}
    s_movk_i32 s43, 3072
    s_movk_i32 s45, 3072
    s_mul_i32 s47, s41, 384
    s_lshl_b32 s48, s46, 7
    s_add_u32 s47, s47, s48
    s_add_u32 s47, s47, {WSUM}
    K0_pgo:
    v_mul_lo_u32 v7, v5, s43
    v_lshl_add_u32 v7, v4, 4, v7
    s_lshl_b32 s43, s43, 5''')
    for it in range(16):
        e(f'buffer_load_dwordx4 v[{64+8*it}:{67+8*it}], v7, s[24:27], s42 offen\nbuffer_load_dwordx4 v[{68+8*it}:{71+8*it}], v7, s[24:27], s42 offen offset:32')
        if it < 15: e('s_add_u32 s42, s42, s43')
    e('''v_and_b32 v8, 15, v0
    v_bfe_u32 v9, v0, 4, 1
    s_cmp_lt_u32 s46, 2
    s_cbranch_scc1 K0_phi
    v_lshlrev_b32 v10, 3, v4
    v_sub_u32 v10, v8, v10
    v_mov_b32 v12, 0x3f80
    v_mov_b32 v13, 0x3f800000''')
    for q in range(4):
        e(f'''v_cmp_eq_u32 vcc, {2*q}, v10
        v_cndmask_b32 v{16+q}, 0, v12, vcc
        v_cmp_eq_u32 vcc, {2*q+1}, v10
        v_cndmask_b32 v{16+q}, v{16+q}, v13, vcc''')
    e('''s_branch K0_pb
    K0_phi:
    s_lshl_b32 s48, s41, 10
    v_lshlrev_b32 v10, 9, v9
    v_lshl_add_u32 v10, v4, 8, v10
    v_lshl_add_u32 v10, v8, 1, v10''')
    for j in range(8):
        e(f'buffer_load_ushort v{32+j}, v10, s[28:31], s48 offen offset:{32*j}')
    e('s_waitcnt vmcnt(0)')
    for q in range(4): e(f'v_lshl_or_b32 v{16+q}, v{33+2*q}, 16, v{32+2*q}')
    e('''
    K0_pb:
    v_cmp_eq_u32 vcc, 0, v9
    v_lshlrev_b32 v11, 4, v2
    v_mov_b32 v14, 0
    s_mov_b32 s49, 0x3f803f80''')
    for q in range(4): e(f'v_cndmask_b32 v{20+q}, 0, v{16+q}, vcc\nv_cndmask_b32 v{24+q}, v{16+q}, 0, vcc')
    e('s_waitcnt vmcnt(0)')
    for it in range(16):
        c = 32 + 16*(it % 2)
        e(f'v_mfma_f32_32x32x16_bf16 v[{c}:{c+15}], v[{64+8*it}:{67+8*it}], v[20:23], 0\nv_mfma_f32_32x32x16_bf16 v[{c}:{c+15}], v[{68+8*it}:{71+8*it}], v[24:27], v[{c}:{c+15}]')
        if it > 0: pk_out(e, it-1)
    pk_out(e, 15)
    e('''v_mov_b32 v15, v14
    v_lshlrev_b32 v3, 2, v3
    v_permlane32_swap_b32 v14, v15
    v_add_f32 v14, v14, v15
    buffer_store_dword v14, v3, s[20:23], s47 offen
    K0_end:
    s_endpgm''')
    return e.l, 192, 0
def pk_out(e, it):
    c = 32 + 16*(it % 2); d = 64+8*it
    for j in range(8): e(f'v_cvt_pk_bf16_f32 v{d+j}, v{c+2*j}, v{c+2*j+1}')
    for j in range(8): e(f'v_dot2c_f32_bf16 v14, s49, v{d+j}')
    e(f'buffer_store_dwordx4 v[{d}:{d+3}], v11, s[20:23], s44 offen\ns_add_u32 s44, s44, s45\nbuffer_store_dwordx4 v[{d+4}:{d+7}], v11, s[20:23], s44 offen\ns_add_u32 s44, s44, s45')

HS=4160; URB=0; URP=7680; YA=2*URP; HB=YA+24576; K1_LDS=HB+16*HS
def K1():
    e = A()
    e(f'''s_cmp_ge_u32 s2, 256
    s_cbranch_scc1 K1_end
    s_load_dwordx4 s[4:7], s[0:1], 32
    s_load_dwordx2 s[18:19], s[0:1], 96
    s_and_b32 s40, s2, 7
    s_lshl_b32 s40, s40, 5
    s_lshr_b32 s41, s2, 3
    s_add_u32 s40, s40, s41
    v_lshrrev_b32 v1, 6, v0
    v_and_b32 v2, 127, v0
    v_lshrrev_b32 v3, 7, v0
    v_readfirstlane_b32 s3, v1
    s_lshl_b32 s41, s40, 13
    v_lshlrev_b32 v4, 4, v0
    v_lshl_add_u32 v4, v3, 11, v4
    s_waitcnt lgkmcnt(0)''')
    e.srd(20, 18, WS_SZ); e.srd(24, 4, 0x200000)
    e(f'''s_lshl_b32 s42, s40, 2
    s_load_dword s43, s[6:7], s42
    v_add_u32 v5, s41, v4
    v_add_u32 v6, -16, v5
    v_cmp_eq_u32 vcc, 0, v2
    v_cndmask_b32 v7, v6, -1, vcc
    buffer_load_dwordx4 v[16:19], v7, s[24:27], 0 offen
    buffer_load_dwordx4 v[20:23], v5, s[24:27], 0 offen
    buffer_load_dwordx4 v[24:27], v5, s[24:27], 0 offen offset:2032
    buffer_load_dwordx4 v[28:31], v5, s[24:27], 0 offen offset:2048
    buffer_load_dwordx4 v[32:35], v5, s[20:23], 0 offen
    buffer_load_dwordx4 v[36:39], v5, s[20:23], 0 offen offset:2048
    s_add_u32 s44, s41, {X0T}
    s_add_u32 s45, s44, 4096
    s_mov_b32 s46, {ST0}
    s_mov_b32 s47, {ST0+8192}
    v_lshlrev_b32 v8, 1, v0
    v_lshlrev_b32 v9, 3, v0''')
    for i in range(8):
        e(f'buffer_load_ushort v{128+i}, v8, s[20:23], s44 offen offset:{512*i}\nbuffer_load_ushort v{152+i}, v8, s[20:23], s45 offen offset:{512*i}')
    for i in range(8):
        e(f'buffer_load_dwordx2 v[{136+2*i}:{137+2*i}], v9, s[20:23], s{46+i//4} offen offset:{2048*(i%2)}')
        if i % 2 == 1: e(f's_add_u32 s{46+i//4}, s{46+i//4}, 4096')
    e(f'''v_mov_b64 v[40:41], 0
    v_mov_b64 v[42:43], 0
    v_bfe_u32 v10, v0, 2, 4
    v_and_b32 v11, 3, v0
    v_min_u32 v11, 2, v11
    v_mul_u32_u24 v10, {HS}, v10
    v_lshl_add_u32 v10, v11, 4, v10
    v_add_u32 v10, {HB}, v10
    ds_write_b128 v10, v[40:43]
    v_mul_u32_u24 v10, {URP}, v3
    v_lshl_add_u32 v11, v2, 4, v10
    ds_write_b128 v11, v[40:43] offset:{URB+5120}
    v_and_b32 v11, 31, v0
    v_lshl_add_u32 v11, v11, 4, v10
    ds_write_b128 v11, v[40:43] offset:{URB+5120+2048}
    v_lshrrev_b32 v11, 2, v2
    v_mul_u32_u24 v11, 80, v11
    v_add_u32 v10, v10, v11
    v_and_b32 v11, 3, v0
    v_lshl_add_u32 v10, v11, 4, v10
    v_mul_u32_u24 v12, {8*HS}, v3
    v_lshl_add_u32 v12, v2, 4, v12
    v_add_u32 v12, {HB}, v12''')
    for i in range(2):
        D = 16+8*i
        e(f's_waitcnt vmcnt({28-2*i})')
        T = 44+18*i
        for k in range(6): e(f'v_alignbit_b32 v{T+k}, v{D+k+1}, v{D+k}, 16\nv_alignbit_b32 v{T+6+k}, v{D+k+2}, v{D+k+1}, 16\nv_mov_b32 v{T+12+k}, v{D+1+k}')
        src = {0:T, 4:T+2, 2:T+6, 6:T+8, 1:T+12, 5:T+14, 3:D+2, 7:D+4}
        for r in (3,7,0,4,2,6,1,5): e(f'ds_write_b128 v12, v[{src[r]}:{src[r]+3}] offset:{r*HS+48+2048*i}')
    e(f'''s_waitcnt vmcnt(24)
    ds_write_b128 v10, v[32:35] offset:{URB}
    ds_write_b128 v10, v[36:39] offset:{URB+2560}
    s_lshr_b32 s48, s3, 1
    s_and_b32 s49, s3, 1
    v_and_b32 v10, 7, v0
    v_mul_u32_u24 v10, {HS}, v10
    v_bfe_u32 v11, v0, 3, 3
    v_lshl_add_u32 v10, v11, 4, v10
    v_bfe_u32 v12, v0, 5, 1
    v_mul_u32_u24 v11, 48, v12
    v_sub_u32 v10, v10, v11
    s_mul_i32 s50, s48, {8*HS}
    s_add_u32 s50, s50, {HB}
    v_add_u32 v10, s50, v10
    v_and_b32 v11, 31, v0
    v_sub_u32 v11, 31, v11
    v_mul_u32_u24 v11, 80, v11
    v_lshl_add_u32 v11, v12, 4, v11
    s_mul_i32 s50, s48, {URP}
    s_add_u32 s50, s50, {URB}
    s_xor_b32 s51, s49, 1
    s_mul_i32 s52, s51, 2560
    s_add_u32 s52, s52, s50
    v_add_u32 v13, s52, v11
    s_mul_i32 s52, s51, 1280
    s_add_u32 s52, s52, s50
    v_add_u32 v14, s52, v11
    s_lshl_b32 s52, s51, 10
    v_add_u32 v15, s52, v10
    s_waitcnt lgkmcnt(0)
    s_barrier''')
    PD = 5
    def rd(st):
        b = 16 + 8*(st % PD)
        hv, uv = ('v10', 'v13') if st < 64 else ('v15', 'v14')
        e(f'ds_read_b128 v[{b}:{b+3}], {uv} offset:{80*(st//2)+32*(st%2)}\nds_read_b128 v[{b+4}:{b+7}], {hv} offset:{32*st}')
    for st in range(PD-1): rd(st)
    for st in range(96):
        if st+PD-1 < 96: rd(st+PD-1)
        rem = min(PD-1, 95-st)
        e(f's_waitcnt lgkmcnt({2*rem})')
        b = 16 + 8*(st % PD); c = 64 if st < 64 else 80
        cin = '0' if st in (0, 64) else f'v[{c}:{c+15}]'
        e(f'v_mfma_f32_32x32x16_bf16 v[{c}:{c+15}], v[{b}:{b+3}], v[{b+4}:{b+7}], {cin}')
    e(f'''v_and_b32 v10, 31, v0
    v_lshlrev_b32 v10, 2, v10
    v_lshl_add_u32 v10, v12, 9, v10
    s_mul_i32 s50, s48, 12288
    s_add_u32 s50, s50, {YA}
    v_add_u32 v10, s50, v10
    s_lshl_b32 s52, s51, 12
    v_add_u32 v11, s52, v10
    s_cmp_eq_u32 s49, 0
    s_nop 7
    s_cbranch_scc1 K1_a''')
    for i in range(8): e(f'v_pk_add_f32 v[{80+2*i}:{81+2*i}], v[{80+2*i}:{81+2*i}], v[{64+2*i}:{65+2*i}]')
    e('s_branch K1_b\nK1_a:')
    for r in range(16): e(f'ds_write_b32 v10, v{64+r} offset:{(8*(r//4)+r%4)*128}')
    e('K1_b:')
    for r in range(16): e(f'ds_write_b32 v11, v{80+r} offset:{4096+(8*(r//4)+r%4)*128}')
    e(f'''v_lshlrev_b32 v10, 2, v0
    v_sub_u32 v11, 255, v0
    v_lshrrev_b32 v12, 5, v11
    v_mul_u32_u24 v12, 80, v12
    v_and_b32 v11, 31, v11
    v_lshl_add_u32 v11, v11, 1, v12
    s_lshl_b32 s44, s43, 16
    s_and_b32 s45, s43, 0xffff0000
    s_mov_b32 s47, 0xffff0000
    s_lshr_b32 s50, s40, 2
    s_lshl_b32 s50, s50, 15
    s_and_b32 s51, s40, 3
    s_lshl_b32 s51, s51, 2
    s_add_u32 s50, s50, s51
    s_add_u32 s51, s50, {X1C}
    s_add_u32 s50, s50, {YC}
    v_lshlrev_b32 v13, 4, v0
    s_waitcnt lgkmcnt(0)
    s_barrier''')
    for i in range(8):
        e(f'''ds_read_b32 v{16+2*i}, v10 offset:{YA+1024*i}
        ds_read_b32 v{17+2*i}, v10 offset:{YA+12288+1024*i}
        ds_read_u16 v{48+2*i}, v11 offset:{URB+640*(7-i)}
        ds_read_u16 v{49+2*i}, v11 offset:{URB+URP+640*(7-i)}''')
        if i >= 4: e(f'ds_read_b32 v{24+2*i}, v10 offset:{YA+4096+1024*i}\nds_read_b32 v{25+2*i}, v10 offset:{YA+12288+4096+1024*i}')
        if i % 2 == 1: e('s_waitcnt lgkmcnt(0)')
    e('s_waitcnt vmcnt(0)')
    for i in range(8):
        y = 16+2*i; u = 48+2*i; st = 136+2*i
        if i >= 4: e(f'v_pk_add_f32 v[{y}:{y+1}], v[{y}:{y+1}], v[{y+8}:{y+9}]'.replace(f'v[{y+8}:{y+9}]', f'v[{24+2*i}:{25+2*i}]'))
        e(f'''v_lshlrev_b32 v{u}, 16, v{u}
        v_lshlrev_b32 v{u+1}, 16, v{u+1}
        v_fmac_f32 v{y}, s44, v{u}
        v_fmac_f32 v{y+1}, s45, v{u+1}
        v_cvt_pk_bf16_f32 v{64+i}, v{y}, v{y+1}
        v_lshlrev_b32 v4, 16, v{128+i}
        v_lshlrev_b32 v5, 16, v{152+i}
        v_lshlrev_b32 v6, 16, v{64+i}
        v_and_b32 v7, s47, v{64+i}
        v_sub_f32 v8, v4, v{st}
        v_sub_f32 v9, v5, v{st}
        v_mul_f32 v6, v6, v{st+1}
        v_mul_f32 v7, v7, v{st+1}
        v_fma_f32 v4, v8, v6, v4
        v_fma_f32 v5, v9, v7, v5
        v_cvt_pk_bf16_f32 v{72+i}, v4, v5
        buffer_store_dword v{64+i}, v13, s[20:23], s50 offen
        buffer_store_dword v{72+i}, v13, s[20:23], s51 offen
        s_add_u32 s50, s50, 4096
        s_add_u32 s51, s51, 4096''')
    e('K1_end:\ns_endpgm')
    return e.l, 160, 0
```

```python
from asmlib import *
from k01 import *
K2_LDS = 98304 + 4352
def swap2(e, a, b, op, oa, ob):
    e(f'v_permlane32_swap_b32 v{a}, v{b}\n{op} v{oa}, v{a}, v{b}\nv_mov_b32 v{ob}, v{oa}\nv_permlane32_swap_b32 v{oa}, v{ob}')
def K2(layer):
    L = f'K2{layer}'
    fly = layer == 1
    XIN = X2C if fly else X1C
    e = A()
    e(f'''s_cmp_ge_u32 s2, 256
    s_cbranch_scc1 {L}_end
    s_load_dwordx2 s[18:19], s[0:1], 96
    s_and_b32 s40, s2, 3
    s_lshl_b32 s40, s40, 2
    s_bfe_u32 s41, s2, 0x20003
    s_add_u32 s40, s40, s41
    s_bfe_u32 s41, s2, 0x10002
    s_lshl_b32 s41, s41, 3
    s_lshr_b32 s42, s2, 5
    s_add_u32 s41, s41, s42
    v_lshrrev_b32 v1, 6, v0
    v_and_b32 v2, 63, v0
    v_and_b32 v3, 31, v0
    v_readfirstlane_b32 s3, v1
    v_bfe_u32 v4, v0, 5, 1
    v_lshlrev_b32 v5, 4, v2
    v_lshlrev_b32 v6, 4, v3
    v_lshl_add_u32 v6, v4, 15, v6
    s_lshl_b32 s43, s40, 2
    s_add_u32 s43, s43, s3
    s_lshl_b32 s44, s43, 9
    s_mul_i32 s45, s41, 98304
    s_mul_i32 s46, s3, 6144
    s_add_u32 s45, s45, s46
    s_add_u32 s45, s45, {WQP}
    s_add_u32 s47, s44, {XIN}
    s_add_u32 s48, s44, {YC}
    s_add_u32 s49, s44, {X3C}
    s_waitcnt lgkmcnt(0)''')
    e.srd(20, 18, WS_SZ)
    if fly:
        e(f's_lshl_b32 s50, s43, 8\ns_add_u32 s50, s50, {ST2}\nv_lshlrev_b32 v7, 3, v3\nv_lshl_add_u32 v7, v4, 17, v7')
        for i in range(8):
            e(f'buffer_load_dwordx2 v[{96+2*i}:{97+2*i}], v7, s[20:23], s50 offen')
            if i < 7: e('s_add_u32 s50, s50, 16384')
    def areg(ks): return (128 + 64*((ks//8) % 2) + 8*(ks % 8)) if fly else 128+4*ks
    def issue(p):
        for half in range(2):
            e('s_mov_b32 m0, s46')
            for j in range(3): e(f'buffer_load_dwordx4 v5, s[20:23], s45 offen offset:{1024*j} lds')
            inc = 3072 if half == 0 else 24576-3072
            e(f's_add_u32 s45, s45, {inc}\ns_add_u32 s46, s46, {inc}')
        for ks in range(8*p, 8*p+8):
            r = areg(ks)
            e(f'buffer_load_dwordx4 v[{r}:{r+3}], v6, s[20:23], s47 offen\ns_add_u32 s47, s47, 65536')
            if fly: e(f'buffer_load_dwordx4 v[{r+4}:{r+7}], v6, s[20:23], s48 offen\ns_add_u32 s48, s48, 65536')
    def issue_ws():
        e(f's_mul_i32 s50, s41, 384\ns_add_u32 s50, s50, {WSUM}\nv_lshlrev_b32 v7, 4, v4')
        for i in range(12): e(f'buffer_load_dwordx4 v[{64+4*i}:{67+4*i}], v7, s[20:23], s50 offen offset:{32*i}')
    per = 22 if fly else 14
    issue(0); issue(1)
    if not fly: issue(2); issue(3)
    e(f'''v_mov_b32 v8, 0
    v_lshlrev_b32 v9, 2, v0
    v_mov_b32 v10, 0
    v_mov_b32 v11, 0
    v_mov_b32 v12, 0
    v_mov_b32 v13, 0
    s_mov_b32 s52, 0x3f803f80
    s_mov_b32 s53, 0xffff0000''')
    e(f'v_add_u32 v9, {98304}, v9')
    for i in range(4): e(f'ds_write_b32 v9, v8 offset:{1024*i}')
    e(f'v_lshlrev_b32 v14, 2, v2\nv_add_u32 v14, {98304+4096}, v14\nds_write_b32 v14, v8')
    e(f'v_lshlrev_b32 v14, 2, v4\nv_sub_u32 v14, v3, v14\nv_mov_b32 v15, 0x3f80\nv_mov_b32 v8, 0x3f800000')
    for s in range(2):
        for q in range(4):
            x = 16*s + 8*(q//2) + 2*(q % 2)
            e(f'v_cmp_eq_u32 vcc, {x}, v14\nv_cndmask_b32 v{112+4*s+q}, 0, v15, vcc\nv_cmp_eq_u32 vcc, {x+1}, v14\nv_cndmask_b32 v{112+4*s+q}, v{112+4*s+q}, v8, vcc')
    if fly:
        e(f's_waitcnt vmcnt({2*per})')
        for i in range(1, 8): e(f'v_pk_add_f32 v[96:97], v[96:97], v[{96+2*i}:{97+2*i}]')
        swap2(e, 96, 97, 'v_add_f32', 98, 99)
        e('''v_mul_f32 v98, 0x3b000000, v98
        v_mul_f32 v99, 0x3b000000, v99
        v_fma_f32 v99, -v98, v98, v99
        v_max_f32 v99, 0, v99
        v_add_f32 v99, 0x3727c5ac, v99
        v_rsq_f32 v120, v99
        s_nop 0
        v_mul_f32 v122, v98, v120
        v_sub_f32 v122, 0, v122''')
    ACC = [16, 32, 48]
    BF = [64, 76, 88] if fly else [96, 76, 64]
    def rdB(ks):
        b = BF[ks % 3]
        for j in range(3): e(f'ds_read_b128 v[{b+4*j}:{b+4*j+3}], v{5 if ks < 16 else 9} offset:{(ks % 16)*3072+1024*j}')
    e('v_add_u32 v9, 49152, v5')
    for p in range(4):
        if fly: cnt = [per, per, per, 0][p]
        else: cnt = [3*per, 2*per, per, 0][p]
        e(f's_waitcnt vmcnt({cnt})' + (' lgkmcnt(0)' if p == 0 else '') + '\ns_barrier')
        rdB(8*p); rdB(8*p+1)
        for ks in range(8*p, 8*p+8):
            r = areg(ks)
            if ks+2 < 8*p+8: rdB(ks+2)
            if fly:
                for j in range(4):
                    e(f'''v_lshlrev_b32 v100, 16, v{r+j}
                    v_and_b32 v101, s53, v{r+j}
                    v_lshlrev_b32 v102, 16, v{r+4+j}
                    v_and_b32 v103, s53, v{r+4+j}
                    v_pk_fma_f32 v[104:105], v[100:101], v[120:121], v[122:123] op_sel_hi:[1,0,0]
                    v_pk_fma_f32 v[104:105], v[104:105], v[102:103], v[100:101]
                    v_cvt_pk_bf16_f32 v{r+j}, v104, v105''')
                e(f's_cmp_lg_u32 s41, {ks//2}\ns_cbranch_scc1 {L}_sk{ks}\nbuffer_store_dwordx4 v[{r}:{r+3}], v6, s[20:23], s49 offen ;cond\n{L}_sk{ks}:\ns_add_u32 s49, s49, 65536')
            rem = min(2, 8*p+7-ks)
            e(f's_waitcnt lgkmcnt({3*rem})')
            b = BF[ks % 3]
            for j in range(3):
                c = ACC[j]; cin = '0' if ks == 0 else f'v[{c}:{c+15}]'
                e(f'v_mfma_f32_32x32x16_bf16 v[{c}:{c+15}], v[{b+4*j}:{b+4*j+3}], v[{r}:{r+3}], {cin}')
                for q in ([0,1],[2],[3])[j]: e(f'v_dot2c_f32_bf16 v{10+q%2}, s52, v{r+q}\nv_dot2c_f32_bf16 v{12+q%2}, v{r+q}, v{r+q}')
        if fly and p < 2: issue(p+2)
        if p == 1 and fly: pass
        if p == 0 and not fly: pass
    return e, L, fly
def K2full(layer):
    e, L, fly = K2(layer)
    e(f's_mul_i32 s50, s41, 384\ns_add_u32 s50, s50, {WSUM}\nv_lshlrev_b32 v7, 4, v4')
    for i in range(12): e(f'buffer_load_dwordx4 v[{128+4*i}:{131+4*i}], v7, s[20:23], s50 offen offset:{32*i}')
    e('v_add_f32 v10, v10, v11\nv_add_f32 v12, v12, v13')
    swap2(e, 10, 12, 'v_add_f32', 64, 66)
    e('''v_mul_f32 v64, 0xbb000000, v64
    v_mul_f32 v66, 0x3b000000, v66
    v_fma_f32 v66, -v64, v64, v66
    v_max_f32 v66, 0, v66
    v_add_f32 v66, 0x3727c5ac, v66
    v_rsq_f32 v66, v66
    s_waitcnt vmcnt(0)
    v_mul_f32 v68, 0x3fb8aa3b, v66''')
    for t in (2, 1, 0):
        for i in range(8):
            c = 16+16*t+2*i; w = 128+16*t+2*i
            e(f'v_pk_fma_f32 v[{c}:{c+1}], v[{w}:{w+1}], v[64:65], v[{c}:{c+1}] op_sel_hi:[1,0,1]')
    for i in range(8): e(f'v_pk_mul_f32 v[{48+2*i}:{49+2*i}], v[{48+2*i}:{49+2*i}], v[66:67] op_sel_hi:[1,0]')
    for i in range(8): e(f'v_cvt_pk_bf16_f32 v{128+i}, v{48+2*i}, v{49+2*i}')
    e('v_mfma_f32_32x32x16_bf16 v[176:191], v[128:131], v[112:115], 0\nv_mfma_f32_32x32x16_bf16 v[176:191], v[132:135], v[116:119], v[176:191]')
    def softmax(c, out):
        e(f'''v_max3_f32 v70, v{c}, v{c+1}, v{c+2}
        v_max3_f32 v71, -v{c}, -v{c+1}, -v{c+2}
        v_max3_f32 v70, v70, v{c+3}, v{c+4}
        v_max3_f32 v71, v71, -v{c+3}, -v{c+4}
        v_max3_f32 v70, v70, v{c+5}, v{c+6}
        v_max3_f32 v71, v71, -v{c+5}, -v{c+6}
        v_max_f32 v70, v70, v{c+7}
        v_max_f32_e64 v71, v71, -v{c+7}''')
        swap2(e, 70, 71, 'v_max_f32', 72, 74)
        e('v_mul_f32_e64 v72, -v72, v68\nv_mul_f32_e64 v74, -v74, v68')
        for i in range(4):
            e(f'v_pk_fma_f32 v[{76+2*i}:{77+2*i}], v[{c+2*i}:{c+2*i+1}], v[68:69], v[72:73] op_sel_hi:[1,0,0]')
            e(f'v_pk_fma_f32 v[{84+2*i}:{85+2*i}], v[{c+2*i}:{c+2*i+1}], v[68:69], v[74:75] op_sel_hi:[1,0,0] neg_lo:[1,0,0] neg_hi:[1,0,0]')
        for i in range(16): e(f'v_exp_f32 v{76+i}, v{76+i}')
        e('''v_pk_add_f32 v[92:93], v[76:77], v[78:79]
        v_pk_add_f32 v[94:95], v[84:85], v[86:87]
        v_pk_add_f32 v[92:93], v[92:93], v[80:81]
        v_pk_add_f32 v[94:95], v[94:95], v[88:89]
        v_pk_add_f32 v[92:93], v[92:93], v[82:83]
        v_pk_add_f32 v[94:95], v[94:95], v[90:91]
        v_add_f32 v70, v92, v93
        v_add_f32 v71, v94, v95''')
        swap2(e, 70, 71, 'v_add_f32', 72, 74)
        e('v_rcp_f32 v72, v72\nv_rcp_f32 v74, v74')
        for i in range(8): e(f'v_pk_mul_f32 v[{76+2*i}:{77+2*i}], v[{76+2*i}:{77+2*i}], v[{72 if i < 4 else 74}:{73 if i < 4 else 75}] op_sel_hi:[1,0]')
        for i in range(8): e(f'v_cvt_pk_bf16_f32 v{out+i}, v{76+2*i}, v{77+2*i}')
    for h in range(2):
        softmax(32+8*h, 136+8*h)
        t = 200+16*h
        e(f'v_mfma_f32_32x32x16_bf16 v[{t}:{t+15}], v[{136+8*h}:{139+8*h}], v[112:115], 0\nv_mfma_f32_32x32x16_bf16 v[{t}:{t+15}], v[{140+8*h}:{143+8*h}], v[116:119], v[{t}:{t+15}]')
        if h == 0:
            e('v_cmp_gt_u32 vcc, 16, v3\nv_mov_b32 v96, 0x3f803f80')
            for i in range(8): e(f'v_cvt_pk_bf16_f32 v{192+i}, v{176+2*i}, v{177+2*i}')
            for i in range(8): e(f'v_cndmask_b32 v{152+i}, v96, v{192+i}, vcc\nv_cndmask_b32 v{160+i}, v{192+i}, v96, vcc')
    e(f's_lshl_b32 s50, s41, 18\ns_lshl_b32 s51, s43, 11\ns_add_u32 s50, s50, s51\ns_add_u32 s50, s50, {PQ}\ns_add_u32 s51, s50, 131072')
    softmax(16, 100)
    e('buffer_store_dwordx4 v[100:103], v5, s[20:23], s50 offen\nbuffer_store_dwordx4 v[104:107], v5, s[20:23], s50 offen offset:1024')
    for h in range(2):
        t = 200+16*h
        for i in range(8): e(f'v_cvt_pk_bf16_f32 v{168+i}, v{t+2*i}, v{t+2*i+1}'.replace('v168', 'v168') if h == 0 else f'v_cvt_pk_bf16_f32 v{232+i}, v{t+2*i}, v{t+2*i+1}')
        A_ = 168 if h == 0 else 232; c = 176 if h == 0 else 32
        e(f'v_mfma_f32_32x32x16_bf16 v[{c}:{c+15}], v[{A_}:{A_+3}], v[{152+8*h}:{155+8*h}], 0\nv_mfma_f32_32x32x16_bf16 v[{c}:{c+15}], v[{A_+4}:{A_+7}], v[{156+8*h}:{159+8*h}], v[{c}:{c+15}]')
    softmax(24, 128)
    e('buffer_store_dwordx4 v[128:131], v5, s[20:23], s51 offen\nbuffer_store_dwordx4 v[132:135], v5, s[20:23], s51 offen offset:1024')
    e(f'''v_mul_u32_u24 v96, 272, v4
    v_add_u32 v96, 98304, v96
    v_min_u32 v97, 16, v3
    v_lshl_add_u32 v97, v97, 4, v96
    v_xor_b32 v98, 16, v3
    v_min_u32 v98, 16, v98
    v_lshl_add_u32 v98, v98, 4, v96
    s_mov_b32 s54, 0x1ffff
    s_mov_b32 s55, 0x1ffff
    s_mov_b64 exec, s[54:55]''')
    for r in range(16): e(f'ds_add_f32 v97, v{176+r} offset:{(r//4)*544+(r%4)*4}')
    e('s_mov_b32 s54, 0xffff0001\ns_mov_b32 s55, 0xffff0001\ns_mov_b64 exec, s[54:55]')
    for r in range(16): e(f'ds_add_f32 v98, v{32+r} offset:{2176+(r//4)*544+(r%4)*4}')
    e(f'''s_mov_b64 exec, -1
    v_lshlrev_b32 v96, 2, v0
    v_add_u32 v97, 98304, v96
    s_mul_i32 s50, s41, 4352
    s_add_u32 s50, s50, {STATE+layer*STATE_L}
    s_waitcnt lgkmcnt(0)
    s_barrier''')
    for i in range(4): e(f'ds_read_b32 v{100+i}, v97 offset:{1024*i}')
    e('ds_read_b32 v104, v97 offset:4096')
    for i in range(4): e(f's_waitcnt lgkmcnt({4-i})\nbuffer_atomic_add_f32 v{100+i}, v96, s[20:23], s50 offen offset:{1024*i}')
    e(f'''s_cmp_lg_u32 s3, 0
    s_cbranch_scc1 {L}_end
    s_add_u32 s50, s50, 4096
    s_waitcnt lgkmcnt(0)
    buffer_atomic_add_f32 v104, v96, s[20:23], s50 offen
    {L}_end:
    s_endpgm''')
    return e.l, 256, 0

def K3(layer):
    L = f'K3{layer}'; last = layer == 1
    e = A()
    e(f'''s_cmp_ge_u32 s2, 256
    s_cbranch_scc1 {L}_end
    s_load_dwordx2 s[18:19], s[0:1], 96
    s_load_dwordx2 s[16:17], s[0:1], 80
    s_and_b32 s40, s2, 7
    s_lshl_b32 s40, s40, 3
    s_lshr_b32 s41, s2, 5
    s_add_u32 s40, s40, s41
    s_bfe_u32 s41, s2, 0x20003
    v_lshrrev_b32 v1, 6, v0
    v_and_b32 v2, 63, v0
    v_and_b32 v3, 31, v0
    v_readfirstlane_b32 s3, v1
    v_bfe_u32 v4, v0, 5, 1
    v_lshlrev_b32 v5, 4, v2
    v_min_u32 v6, 16, v3
    v_lshlrev_b32 v6, 4, v6
    v_mul_u32_u24 v7, 272, v4
    v_add_u32 v6, v6, v7
    s_mul_i32 s42, s3, {8*2176}
    s_add_u32 s42, s42, {STATE+layer*STATE_L}
    s_lshl_b32 s43, s3, 20
    s_lshl_b32 s44, s40, 11
    s_add_u32 s43, s43, s44
    s_add_u32 s43, s43, {PQ}
    s_lshl_b32 s44, s41, 2
    s_add_u32 s44, s44, s3
    s_lshl_b32 s45, s44, 15
    s_add_u32 s45, s45, {WOP}
    s_waitcnt lgkmcnt(0)''')
    e.srd(20, 18, WS_SZ)
    for h in range(8):
        for g in range(4): e(f'buffer_load_dwordx4 v[{64+16*h+4*g}:{67+16*h+4*g}], v6, s[20:23], s42 offen offset:{544*g}')
        for s in range(2): e(f'buffer_load_dwordx4 v[{192+8*h+4*s}:{195+8*h+4*s}], v5, s[20:23], s43 offen offset:{1024*s}')
        if h < 7: e('s_add_u32 s42, s42, 2176\ns_add_u32 s43, s43, 131072')
    def wo(k0, k1):
        for ks in range(k0, k1):
            e(f'buffer_load_dwordx4 a[{4*ks}:{4*ks+3}], v5, s[20:23], s45 offen offset:{1024*(ks%4)}')
            if ks % 4 == 3: e('s_add_u32 s45, s45, 4096')
    wo(0, 12)
    e(f'''s_lshl_b32 s46, s44, 17
    s_lshl_b32 s47, s40, 9
    s_add_u32 s46, s46, s47
    s_add_u32 s47, s46, {X3C if last else X1C}
    s_add_u32 s46, s46, {X2C}
    v_lshlrev_b32 v8, 4, v3
    v_lshl_add_u32 v9, v4, 3, v8
    v_lshl_add_u32 v8, v4, 15, v8
    s_lshl_b32 s48, s3, 13
    v_add_u32 v10, s48, v5''')
    extra = {0:(12,16), 1:(16,20), 2:(20,26), 3:(26,32)}
    issued = 60
    def fin(h):
        c = 16+16*(h % 2)
        e(f'v_add_f32 v12, 0x358637bd, v{c+8}\nv_rcp_f32 v12, v12')
        for i in range(4): e(f'v_pk_mul_f32 v[{c+2*i}:{c+2*i+1}], v[{c+2*i}:{c+2*i+1}], v[12:13] op_sel_hi:[1,0]')
        for i in range(4): e(f'v_cvt_pk_bf16_f32 v{56+4*(h%2)+i}, v{c+2*i}, v{c+2*i+1}')
        e(f'ds_write_b128 v10, v[{56+4*(h%2)}:{59+4*(h%2)}] offset:{1024*h}')
    for h in range(8):
        e(f's_waitcnt vmcnt({issued-6*(h+1)})')
        b = 64+16*h
        for i in range(8): e(f'v_cvt_pk_bf16_f32 v{b+i}, v{b+2*i}, v{b+2*i+1}')
        c = 16+16*(h % 2)
        e(f'v_mfma_f32_32x32x16_bf16 v[{c}:{c+15}], v[{b}:{b+3}], v[{192+8*h}:{195+8*h}], 0\nv_mfma_f32_32x32x16_bf16 v[{c}:{c+15}], v[{b+4}:{b+7}], v[{196+8*h}:{199+8*h}], v[{c}:{c+15}]')
        if h in extra: wo(*extra[h]); issued += extra[h][1]-extra[h][0]
        if h == 3:
            for g in range(4):
                e(f'buffer_load_dwordx2 v[{48+2*g}:{49+2*g}], v9, s[20:23], s47 offen\ns_add_u32 s47, s47, 32768')
            issued += 4
        if h > 0: fin(h-1)
    fin(7)
    e('s_waitcnt lgkmcnt(0)\ns_barrier')
    PD = 6
    def rd(ks): e(f'ds_read_b128 v[{64+4*(ks%PD)}:{67+4*(ks%PD)}], v5 offset:{1024*ks}')
    for ks in range(PD-1): rd(ks)
    for ks in range(32):
        if ks+PD-1 < 32: rd(ks+PD-1)
        w = f's_waitcnt lgkmcnt({min(PD-1, 31-ks)})'
        if ks in (0, 12, 16, 20, 26): w += f' vmcnt({ {0:24,12:20,16:16,20:10,26:4}[ks] })'
        e(w)
        e(f'v_mfma_f32_32x32x16_bf16 v[16:31], a[{4*ks}:{4*ks+3}], v[{64+4*(ks%PD)}:{67+4*(ks%PD)}], {"0" if ks == 0 else "v[16:31]"}')
    e('s_mov_b32 s53, 0xffff0000\ns_mov_b32 s52, 0x3f803f80\ns_waitcnt vmcnt(0)')
    for i in range(8): e(f'v_lshlrev_b32 v{32+2*i}, 16, v{48+i}\nv_and_b32 v{33+2*i}, s53, v{48+i}')
    for i in range(8): e(f'v_pk_add_f32 v[{16+2*i}:{17+2*i}], v[{16+2*i}:{17+2*i}], v[{32+2*i}:{33+2*i}]')
    for i in range(8): e(f'v_cvt_pk_bf16_f32 v{32+i}, v{16+2*i}, v{17+2*i}')
    if not last:
        e('v_mov_b32 v12, 0\nv_mov_b32 v13, 0')
        for i in range(8): e(f'v_dot2c_f32_bf16 v12, s52, v{32+i}\nv_dot2c_f32_bf16 v13, v{32+i}, v{32+i}')
    e('v_permlane32_swap_b32 v32, v34\nv_permlane32_swap_b32 v33, v35\nv_permlane32_swap_b32 v36, v38\nv_permlane32_swap_b32 v37, v39')
    if last:
        e.srd(24, 16, 0x200000)
        e(f'''s_lshl_b32 s46, s40, 15
        s_lshl_b32 s47, s44, 6
        s_add_u32 s46, s46, s47
        v_lshlrev_b32 v8, 10, v3
        v_lshl_add_u32 v8, v4, 4, v8
        buffer_store_dwordx4 v[32:35], v8, s[24:27], s46 offen
        buffer_store_dwordx4 v[36:39], v8, s[24:27], s46 offen offset:32''')
    else:
        e(f'''buffer_store_dwordx4 v[32:35], v8, s[20:23], s46 offen
        s_add_u32 s46, s46, 65536
        buffer_store_dwordx4 v[36:39], v8, s[20:23], s46 offen''')
        swap2(e, 12, 13, 'v_add_f32', 14, 15)
        e(f'''s_lshl_b32 s46, s44, 14
        s_lshl_b32 s47, s40, 8
        s_add_u32 s46, s46, s47
        s_add_u32 s46, s46, {ST2}
        v_lshlrev_b32 v8, 3, v3
        buffer_store_dwordx2 v[14:15], v8, s[20:23], s46 offen''')
    e(f'{L}_end:\ns_endpgm')
    return e.l, 256, 128
```

```python
import sys
from asmlib import *
from k01 import *
from k23 import *
NAME='interleave_layers__ssm_conv_h3__linear_kernel_hedgehog__prompt'
hdr = [l for l in open(f'cdna_kernels/{NAME}.s.ref').read().split('\n') if l.startswith(';') and '@launch' not in l]
ks = [('k0_kernel', K0(), 352, 16384), ('k1_kernel', K1(), 256, K1_LDS), ('k2a_kernel', K2full(0), 256, K2_LDS), ('k3a_kernel', K3(0), 256, 32768),
      ('k2b_kernel', K2full(1), 256, K2_LDS), ('k3b_kernel', K3(1), 256, 32768)]
n = int(sys.argv[2]) if len(sys.argv) > 2 else len(ks)
out = hdr + [f'; @launch kernel={k} grid=({g},1,1) block=(256,1,1) lds={l}' for k, _, g, l in ks[:n]]
out += ['.amdgcn_target "amdgcn-amd-amdhsa--gfx950"', '.text']
for k, (body, nv, na), g, l in ks:
    out += [f'.globl {k}', '.p2align 8', f'.type {k},@function', f'{k}:'] + fix_hazards(body)
out += ['.section .rodata,"a"']
for k, (body, nv, na), g, l in ks:
    out += ['.p2align 6', f'.amdhsa_kernel {k}', f'  .amdhsa_next_free_vgpr {nv+na}', '  .amdhsa_next_free_sgpr 100', f'  .amdhsa_accum_offset {nv}',
            '  .amdhsa_group_segment_fixed_size 0', '  .amdhsa_kernarg_size 104', '  .amdhsa_user_sgpr_count 2', '  .amdhsa_user_sgpr_kernarg_segment_ptr 1',
            '  .amdhsa_system_sgpr_workgroup_id_x 1', '.end_amdhsa_kernel']
open(sys.argv[1] if len(sys.argv) > 1 else f'cdna_kernels/{NAME}.s', 'w').write('\n'.join(out)+'\n')
```

```python
import re
TRANS = ('v_exp_f32','v_log_f32','v_rcp_f32','v_rsq_f32','v_sqrt_f32','v_sin_f32','v_cos_f32')
def regs_of(tok):
    tok = tok.strip()
    tok = re.sub(r'^-|^abs\(|\)$|^\|', '', tok).strip('|')
    m = re.fullmatch(r'([vas])\[(\d+):(\d+)\]', tok)
    if m: return [(m.group(1), i) for i in range(int(m.group(2)), int(m.group(3))+1)]
    m = re.fullmatch(r'([vas])(\d+)', tok)
    if m: return [(m.group(1), int(m.group(2)))]
    if tok == 'vcc': return [('s', 106), ('s', 107)]
    if tok == 'exec': return [('s', 126), ('s', 127)]
    if tok == 'm0': return [('s', 124)]
    return []
def parse(line):
    line = line.split(';')[0].strip()
    if not line or line.endswith(':') or line.startswith('.'): return None
    p = line.split(None, 1)
    op = p[0]; rest = p[1] if len(p) > 1 else ''
    toks = [t.split()[0] if t.split() else '' for t in re.split(r',(?![^\[]*\])', rest)]
    ops = [regs_of(t) for t in toks]
    I = dict(op=op, w=[], r=[], line=line, srcc=[], ab=[], data=[])
    flat = lambda l: [x for y in l for x in y]
    if op.startswith('v_mfma'):
        I['k'] = 'mfma'; I['w'] = ops[0]; I['ab'] = ops[1]+ops[2]; I['srcc'] = ops[3]; I['r'] = flat(ops[1:])
        I['passes'] = 8 if '32x32x16' in op else 4
    elif op.startswith('buffer_load') or op.startswith('global_load'):
        I['k'] = 'vmem'
        if re.search(r'\blds\b', line): I['r'] = flat(ops)+[('s',124)]; I['ldsdma'] = 1
        else: I['w'] = ops[0]; I['r'] = flat(ops[1:])
    elif op.startswith('buffer_') or op.startswith('global_'):
        I['k'] = 'vmem'; I['r'] = flat(ops)
        if 'x4' in op or 'x3' in op: I['data'] = ops[0] if op.startswith('buffer') else ops[1]
    elif op.startswith('ds_read'):
        I['k'] = 'ds'; I['w'] = ops[0]; I['r'] = flat(ops[1:])
    elif op.startswith('ds_'):
        I['k'] = 'ds'; I['r'] = flat(ops)
    elif op.startswith('v_'):
        I['k'] = 'valu'
        if 'permlane' in op: I['w'] = flat(ops); I['r'] = flat(ops); I['perm'] = 1
        elif op.startswith('v_cmp'): I['w'] = ops[0]; I['r'] = flat(ops[1:])
        elif '_co_' in op: I['w'] = ops[0]+ops[1]; I['r'] = flat(ops[2:])
        else:
            I['w'] = ops[0]; I['r'] = flat(ops[1:])
            if 'fmac' in op or 'dot2c' in op: I['r'] = I['r']+ops[0]
        I['trans'] = op.replace('_e32','').replace('_e64','') in TRANS
        I['dot'] = 'dot2' in op
        I['dpp'] = 'dpp' in op
        I['rl'] = 'readfirstlane' in op or 'readlane' in op
    elif op.startswith('s_'):
        I['k'] = 'salu'
        if op == 's_nop': I['n'] = int(toks[0], 0)+1
        elif op.startswith('s_cmp') or op.startswith('s_cbranch') or op in ('s_waitcnt','s_barrier','s_branch','s_endpgm','s_setprio'): I['r'] = flat(ops)
        else: I['w'] = ops[0] if ops else []; I['r'] = flat(ops[1:])
        if 'saveexec' in op: I['w'] = I['w']+[('s',126),('s',127)]
    else: raise Exception('unknown '+line)
    return I
def need(P, C):
    n = 0
    pw = set(P['w']); cr = set(C['r']); cw = set(C['w'])
    if P['k'] == 'mfma':
        ps = P['passes']; big = {8:12, 4:8}[ps]
        if C['k'] == 'mfma':
            if pw & set(C['ab']): n = max(n, big)
            if pw & set(C['srcc']):
                if not (C['srcc'] == P['w'] and C['passes'] == ps): n = max(n, big-2)
            elif pw & cw: n = max(n, big)
        elif C['k'] in ('valu','vmem','ds'):
            if pw & (cr | cw): n = max(n, big)
            if C['k'] == 'valu' and set(P['srcc']) & cw: n = max(n, ps-1)
    elif P['k'] == 'valu':
        pv = {x for x in pw if x[0] != 's'}; psg = {x for x in pw if x[0] == 's'}
        if C['k'] == 'mfma' and pv & cr: n = max(n, 2)
        if C['k'] == 'mfma' and ('s',126) in psg: n = max(n, 4)
        if C['k'] == 'valu':
            if P['trans'] and not C['trans'] and pv & cr: n = max(n, 1)
            if (C.get('perm') or C['dpp']) and pv & cr: n = max(n, 2)
            if C['rl'] and pv & cr: n = max(n, 1)
            if psg & cr: n = max(n, 4 if C['rl'] else 2)
            if P['dot'] and pv & (cr | cw):
                if not (C['op'] == P['op'] and not (pv & set(C['r'][:2]) - set(C['w']))): n = max(n, 3)
            if 'sdwa' in P['op'] and pv & cr: n = max(n, 1)
        if C['k'] in ('vmem','ds') and P['dot'] and pv & cr: n = max(n, 3)
        if C['k'] == 'mfma' and P['dot'] and pv & cr: n = max(n, 3)
        if C['k'] == 'vmem' and psg & cr: n = max(n, 5)
    elif P['k'] == 'vmem':
        if set(P['data']) & cw: n = max(n, 2)
    elif P['k'] == 'salu':
        if ('s',124) in pw and C.get('ldsdma'): n = max(n, 1)
    return n
def fix_hazards(lines):
    out = []; hist = []
    for ln in lines:
        I = parse(ln)
        if I is None:
            out.append(ln); continue
        dist = 0; req = 0
        for P in reversed(hist):
            r = need(P, I) - dist
            req = max(req, r)
            dist += P.get('n', 1)
            if dist > 20: break
        while req > 0:
            k = min(req, 16)
            out.append(f'  s_nop {k-1}'); hist.append(dict(op='s_nop', k='salu', n=k, w=[], r=[], data=[])); req -= k
        if ';cond' in ln: I['n'] = 0
        out.append(ln); hist.append(I)
        hist = hist[-24:]
    return out
class A:
    def __init__(s): s.l = []
    def __call__(s, t):
        for x in t.strip().split('\n'): s.l.append('  '+x.strip() if not x.strip().endswith(':') else x.strip())
    ph = 0
    def stamp(s):
        import os
        if not os.environ.get('STAMP'): return
        s.ns = getattr(s, 'ns', 0)
        s(f's_memtime s[{64+2*s.ns}:{65+2*s.ns}]\ns_waitcnt lgkmcnt(0)'); s.ns += 1
    def dump(s, L):
        import os
        if not os.environ.get('STAMP'): return
        s.stamp()
        s(f's_load_dwordx2 s[60:61], s[0:1], 88\ns_and_b32 s62, s2, 63\ns_cmp_lg_u32 s62, 5\ns_cbranch_scc1 {L}_nd\ns_cmp_lg_u32 s3, 0\ns_cbranch_scc1 {L}_nd\ns_lshr_b32 s63, s2, 6\ns_lshl_b32 s63, s63, 6\ns_add_u32 s63, s63, {512*A.ph}\ns_waitcnt lgkmcnt(0)')
        s.srd(56, 60, 4096); A.ph += 1
        s('v_mov_b32 v1, 0')
        for i in range(s.ns): s(f'v_mov_b32 v2, s{64+2*i}\nbuffer_store_dword v2, v1, s[56:59], s63 offen offset:{4*i}')
        s(f'{L}_nd:')
    def srd(s, d, b, n):
        s(f's_mov_b32 s{d}, s{b}\ns_and_b32 s{d+1}, s{b+1}, 0xffff\ns_mov_b32 s{d+2}, {n}\ns_mov_b32 s{d+3}, 0x20000')
def v(i, n=1): return f'v{i}' if n == 1 else f'v[{i}:{i+n-1}]'
def a(i, n=1): return f'a{i}' if n == 1 else f'a[{i}:{i+n-1}]'
```

```python
import os
from asmlib import *
URT=0x0; X0T=0x200000; ST0=0x400000; WQP=0x500000; WSUM=0x680000; WOP=0x700000
YC=0x800000; X1C=0xA00000; X2C=0xC00000; X3C=0xE00000; PQ=0x1000000; STATE=0x1400000; ST2=0x1400000+2*32*2176
WS_SZ=0x1900000; PQ1=0x1500000; FLG=ST2+65536; STATE_L=32*2176
def ws_srd(A_, d, tmp):
    A_(f's_load_dwordx2 s[{tmp}:{tmp+1}], s[0:1], 96')
def K0():
    e = A()
    e('''s_cmp_ge_u32 s2, 352
    s_cbranch_scc1 K0_end
    s_load_dwordx4 s[4:7], s[0:1], 0
    s_load_dwordx4 s[8:11], s[0:1], 16
    s_load_dwordx4 s[12:15], s[0:1], 56
    s_load_dwordx2 s[16:17], s[0:1], 72
    s_load_dwordx2 s[18:19], s[0:1], 96
    v_lshrrev_b32 v1, 6, v0
    v_and_b32 v2, 63, v0
    s_nop 0
    v_readfirstlane_b32 s3, v1
    s_waitcnt lgkmcnt(0)''')
    e.srd(20, 18, WS_SZ)
    e('''s_cmp_lt_u32 s2, 64
    s_cbranch_scc1 K0_pack
    s_cmp_lt_u32 s2, 96
    s_cbranch_scc1 K0_stats''')
    e.srd(24, 4, 0x200000)
    e.srd(28, 6, 0x200000)
    e.srd(32, 8, 0x200000)
    e.srd(36, 10, 4096)
    e(f'''s_sub_u32 s40, s2, 96
    s_lshr_b32 s41, s40, 3
    s_and_b32 s42, s40, 7
    v_lshrrev_b32 v3, 3, v0
    v_and_b32 v4, 7, v0
    s_lshl_b32 s43, s41, 16
    s_lshl_b32 s44, s42, 7
    s_add_u32 s43, s43, s44
    v_lshlrev_b32 v5, 11, v3
    v_lshl_add_u32 v5, v4, 4, v5
    v_add_u32 v5, s43, v5
    v_add_u32 v6, 0xfffff400, v5
    v_add_u32 v7, 0xfffff800, v5
    v_add_u32 v8, 0xfffffc00, v5
    s_lshl_b32 s45, s42, 9
    v_lshl_add_u32 v9, v4, 6, s45
    buffer_load_dwordx4 v[16:19], v6, s[28:31], 0 offen
    buffer_load_dwordx4 v[20:23], v7, s[28:31], 0 offen
    buffer_load_dwordx4 v[24:27], v8, s[28:31], 0 offen
    buffer_load_dwordx4 v[28:31], v5, s[28:31], 0 offen
    buffer_load_dwordx4 v[32:35], v5, s[28:31], 0 offen offset:1024
    buffer_load_dwordx4 v[36:39], v5, s[32:35], 0 offen
    buffer_load_dwordx4 v[40:43], v5, s[32:35], 0 offen offset:1024
    buffer_load_dwordx4 v[52:55], v9, s[36:39], 0 offen
    buffer_load_dwordx4 v[56:59], v9, s[36:39], 0 offen offset:16
    buffer_load_dwordx4 v[60:63], v9, s[36:39], 0 offen offset:32
    buffer_load_dwordx4 v[64:67], v9, s[36:39], 0 offen offset:48
    buffer_load_dwordx4 v[44:47], v5, s[24:27], 0 offen
    buffer_load_dwordx4 v[48:51], v5, s[24:27], 0 offen offset:1024
    s_add_u32 s48, s18, {STATE}
    s_addc_u32 s49, s19, 0''')
    e.srd(52, 48, 2*STATE_L+65536+57344)
    e(f'''s_lshl_b32 s46, s40, 10
    v_lshl_add_u32 v10, v0, 2, s46
    v_mov_b32 v11, 0
    buffer_store_dword v11, v10, s[52:55], 0 offen
    v_lshrrev_b32 v12, 2, v3
    v_xor_b32 v13, v12, v4
    v_lshlrev_b32 v13, 4, v13
    v_lshl_add_u32 v13, v4, 10, v13
    v_and_b32 v14, 3, v3
    v_lshl_add_u32 v15, v14, 2, v13
    v_xor_b32 v14, 0x7c, v15
    s_mov_b32 s50, 0x05040100
    s_mov_b32 s51, 0x07060302
    s_mov_b32 s47, 0xffff0000
    s_waitcnt vmcnt(3)''')
    for i in range(8):
        lo = (i % 2 == 0); d = i//2
        def up(dst, src):
            return f'v_lshlrev_b32 v{dst}, 16, v{src}' if lo else f'v_and_b32 v{dst}, s47, v{src}'
        for r in range(5): e(up(70+r, 16+4*r+d))
        e(up(75, 36+d)); e(up(76, 40+d))
        w = 52+2*i
        e(f'''v_lshlrev_b32 v77, 16, v{w}
        v_and_b32 v78, s47, v{w}
        v_lshlrev_b32 v79, 16, v{w+1}
        v_and_b32 v80, s47, v{w+1}
        v_mul_f32 v81, v70, v80
        v_mul_f32 v82, v71, v80
        v_fmac_f32 v81, v71, v79
        v_fmac_f32 v82, v72, v79
        v_fmac_f32 v81, v72, v78
        v_fmac_f32 v82, v73, v78
        v_fmac_f32 v81, v73, v77
        v_fmac_f32 v82, v74, v77
        v_mul_f32 v81, v81, v75
        v_mul_f32 v82, v82, v76
        v_cvt_pk_bf16_f32 v{84+i}, v82, v81
        ds_write_b32 v14, v{84+i} offset:{i*128}''')
    e('s_waitcnt vmcnt(1)')
    for i in range(8):
        e(f'v_perm_b32 v{92+i}, v{48+i//2}, v{44+i//2}, s{50+(i%2)}\nds_write_b32 v15, v{92+i} offset:{8192+i*128}')
    e(f'''v_lshrrev_b32 v12, 6, v0
    v_xor_b32 v12, v12, v4
    v_lshlrev_b32 v12, 4, v12
    v_lshl_add_u32 v12, v3, 7, v12
    v_xor_b32 v13, 64, v12
    s_lshl_b32 s43, s42, 18
    s_lshl_b32 s44, s41, 7
    s_add_u32 s45, s43, s44
    s_add_u32 s45, s45, {X0T}
    s_sub_u32 s43, s43, s44
    s_add_u32 s43, s43, {URT+3968}
    v_lshlrev_b32 v5, 12, v3
    v_lshl_add_u32 v5, v4, 4, v5
    v_add_u32 v6, 0x20000, v5
    s_waitcnt lgkmcnt(0)
    s_barrier
    ds_read_b128 v[16:19], v12
    ds_read_b128 v[20:23], v13 offset:4096
    ds_read_b128 v[24:27], v12 offset:8192
    ds_read_b128 v[28:31], v13 offset:12288
    s_waitcnt lgkmcnt(3)
    buffer_store_dwordx4 v[16:19], v5, s[20:23], s43 offen
    s_waitcnt lgkmcnt(2)
    buffer_store_dwordx4 v[20:23], v6, s[20:23], s43 offen
    s_waitcnt lgkmcnt(1)
    buffer_store_dwordx4 v[24:27], v5, s[20:23], s45 offen
    s_waitcnt lgkmcnt(0)
    buffer_store_dwordx4 v[28:31], v6, s[20:23], s45 offen
    s_endpgm''')
    e('K0_stats:')
    e.srd(24, 4, 0x200000)
    e('''s_sub_u32 s40, s2, 64
    s_lshl_b32 s40, s40, 6
    v_lshrrev_b32 v3, 2, v0
    v_add_u32 v3, s40, v3
    v_and_b32 v4, 3, v0
    v_lshlrev_b32 v5, 10, v3
    v_lshl_add_u32 v5, v4, 4, v5''')
    for i in range(16): e(f'buffer_load_dwordx4 v[{16+4*i}:{19+4*i}], v5, s[24:27], 0 offen offset:{64*i}')
    e('v_mov_b32 v6, 0\nv_mov_b32 v7, 0\ns_mov_b32 s41, 0x3f803f80')
    for i in range(16):
        e(f's_waitcnt vmcnt({15-i})')
        for j in range(4): e(f'v_dot2c_f32_bf16 v6, s41, v{16+4*i+j}\nv_dot2c_f32_bf16 v7, v{16+4*i+j}, v{16+4*i+j}')
    e(f'''v_add_f32_dpp v8, v6, v6 quad_perm:[1,0,3,2] row_mask:0xf bank_mask:0xf
    v_add_f32_dpp v9, v7, v7 quad_perm:[1,0,3,2] row_mask:0xf bank_mask:0xf
    v_add_f32_dpp v6, v8, v8 quad_perm:[2,3,0,1] row_mask:0xf bank_mask:0xf
    v_add_f32_dpp v7, v9, v9 quad_perm:[2,3,0,1] row_mask:0xf bank_mask:0xf
    v_mul_f32 v8, 0x3b000000, v6
    v_mul_f32 v7, 0x3b000000, v7
    v_fma_f32 v7, -v8, v8, v7
    v_max_f32 v7, 0, v7
    v_add_f32 v7, 0x3727c5ac, v7
    v_rsq_f32 v9, v7
    v_lshlrev_b32 v3, 3, v3
    s_mov_b32 s42, {ST0}
    buffer_store_dwordx2 v[8:9], v3, s[20:23], s42 offen
    s_endpgm''')
    e('K0_pack:')
    e.srd(24, 12, 512*3072)
    e.srd(28, 14, 16384)
    e(f'''s_mov_b32 s40, s2
    v_and_b32 v3, 31, v0
    v_bfe_u32 v4, v0, 5, 1
    v_and_b32 v5, 0x13, v3
    v_and_b32 v6, 4, v3
    v_lshl_or_b32 v5, v6, 1, v5
    v_and_b32 v6, 8, v3
    v_lshrrev_b32 v6, 1, v6
    v_or_b32 v5, v5, v6
    s_cmp_lt_u32 s40, 48
    s_cbranch_scc1 K0_pq''')
    e.srd(24, 16, 512*1024)
    e(f'''s_sub_u32 s41, s40, 48
    s_lshl_b32 s42, s41, 6
    s_movk_i32 s43, 1024
    s_lshl_b32 s44, s41, 15
    s_add_u32 s44, s44, {WOP}
    s_movk_i32 s45, 1024
    s_mov_b32 s46, 2
    v_mov_b32 v5, v3
    s_mov_b32 s47, {WSUM+8192}
    s_branch K0_pgo
    K0_pq:
    s_lshr_b32 s46, s40, 4
    s_and_b32 s41, s40, 15
    s_lshl_b32 s42, s41, 6
    s_lshl_b32 s43, s46, 10
    s_add_u32 s42, s42, s43
    s_mul_i32 s44, s41, 98304
    s_add_u32 s44, s44, s43
    s_add_u32 s44, s44, {WQP}
    s_movk_i32 s43, 3072
    s_movk_i32 s45, 3072
    s_mul_i32 s47, s41, 384
    s_lshl_b32 s48, s46, 7
    s_add_u32 s47, s47, s48
    s_add_u32 s47, s47, {WSUM}
    K0_pgo:
    v_mul_lo_u32 v7, v5, s43
    v_lshl_add_u32 v7, v4, 4, v7
    s_lshl_b32 s43, s43, 5
    s_lshl_b32 s48, s3, 2
    s_mul_i32 s49, s48, s43
    s_add_u32 s42, s42, s49
    s_lshl_b32 s48, s48, 1
    s_mul_i32 s49, s48, s45
    s_add_u32 s44, s44, s49''')
    for it in range(4):
        e(f'buffer_load_dwordx4 v[{64+8*it}:{67+8*it}], v7, s[24:27], s42 offen\nbuffer_load_dwordx4 v[{68+8*it}:{71+8*it}], v7, s[24:27], s42 offen offset:32')
        if it < 3: e('s_add_u32 s42, s42, s43')
    e('''v_and_b32 v8, 15, v0
    v_bfe_u32 v9, v0, 4, 1
    s_cmp_lt_u32 s46, 2
    s_cbranch_scc1 K0_phi
    v_lshlrev_b32 v10, 3, v4
    v_sub_u32 v10, v8, v10
    v_mov_b32 v12, 0x3f80
    v_mov_b32 v13, 0x3f800000''')
    for q in range(4):
        e(f'''v_cmp_eq_u32 vcc, {2*q}, v10
        v_cndmask_b32 v{16+q}, 0, v12, vcc
        v_cmp_eq_u32 vcc, {2*q+1}, v10
        v_cndmask_b32 v{16+q}, v{16+q}, v13, vcc''')
    e('''s_branch K0_pb
    K0_phi:
    s_lshl_b32 s48, s41, 10
    v_lshlrev_b32 v10, 9, v9
    v_lshl_add_u32 v10, v4, 8, v10
    v_lshl_add_u32 v10, v8, 1, v10''')
    for j in range(8):
        e(f'buffer_load_ushort v{32+j}, v10, s[28:31], s48 offen offset:{32*j}')
    e('s_waitcnt vmcnt(0)')
    for q in range(4): e(f'v_lshl_or_b32 v{16+q}, v{33+2*q}, 16, v{32+2*q}')
    e('''
    K0_pb:
    v_cmp_eq_u32 vcc, 0, v9
    v_lshlrev_b32 v11, 4, v2
    v_mov_b32 v14, 0
    s_mov_b32 s49, 0x3f803f80''')
    for q in range(4): e(f'v_cndmask_b32 v{20+q}, 0, v{16+q}, vcc\nv_cndmask_b32 v{24+q}, v{16+q}, 0, vcc')
    e('s_waitcnt vmcnt(0)')
    for it in range(4):
        c = 32 + 16*(it % 2)
        e(f'v_mfma_f32_32x32x16_bf16 v[{c}:{c+15}], v[{64+8*it}:{67+8*it}], v[20:23], 0\nv_mfma_f32_32x32x16_bf16 v[{c}:{c+15}], v[{68+8*it}:{71+8*it}], v[24:27], v[{c}:{c+15}]')
        if it > 0: pk_out(e, it-1)
    pk_out(e, 3)
    e('''v_mov_b32 v15, v14
    v_lshlrev_b32 v3, 2, v3
    v_permlane32_swap_b32 v14, v15
    v_add_f32 v14, v14, v15
    s_lshl_b32 s48, s3, 7
    v_add_u32 v15, s48, v3
    ds_write_b32 v15, v14
    s_waitcnt lgkmcnt(0)
    s_barrier
    ds_read2_b32 v[16:17], v3 offset0:0 offset1:32
    ds_read2_b32 v[18:19], v3 offset0:64 offset1:96
    s_waitcnt lgkmcnt(0)
    v_add_f32 v16, v16, v17
    v_add_f32 v18, v18, v19
    v_add_f32 v14, v16, v18
    buffer_store_dword v14, v3, s[20:23], s47 offen
    K0_end:
    s_endpgm''')
    return e.l, 104, 0
def pk_out(e, it):
    c = 32 + 16*(it % 2); d = 64+8*it
    for j in range(8): e(f'v_cvt_pk_bf16_f32 v{d+j}, v{c+2*j}, v{c+2*j+1}')
    for j in range(8): e(f'v_dot2c_f32_bf16 v14, s49, v{d+j}')
    e(f'buffer_store_dwordx4 v[{d}:{d+3}], v11, s[20:23], s44 offen\ns_add_u32 s44, s44, s45\nbuffer_store_dwordx4 v[{d+4}:{d+7}], v11, s[20:23], s44 offen\ns_add_u32 s44, s44, s45')

HS=4160; URB=0; URP=7680; YA=2*URP; HB=YA+24576; K1_LDS=HB+16*HS
def K1():
    e = A()
    e(f'''s_cmp_ge_u32 s2, 256
    s_cbranch_scc1 K1_end
    s_load_dwordx4 s[4:7], s[0:1], 32
    s_load_dwordx2 s[18:19], s[0:1], 96
    s_and_b32 s40, s2, 7
    s_lshl_b32 s40, s40, 5
    s_lshr_b32 s41, s2, 3
    s_add_u32 s40, s40, s41
    v_lshrrev_b32 v1, 6, v0
    v_and_b32 v2, 127, v0
    v_lshrrev_b32 v3, 7, v0
    v_readfirstlane_b32 s3, v1
    s_lshl_b32 s41, s40, 13
    v_lshlrev_b32 v4, 4, v0
    v_lshl_add_u32 v4, v3, 11, v4
    s_waitcnt lgkmcnt(0)''')
    e.srd(20, 18, WS_SZ); e.srd(24, 4, 0x200000)
    e.stamp()
    e(f'''s_lshl_b32 s42, s40, 2
    s_load_dword s43, s[6:7], s42
    v_add_u32 v5, s41, v4
    v_add_u32 v6, -16, v5
    v_cmp_eq_u32 vcc, 0, v2
    v_cndmask_b32 v7, v6, -1, vcc
    buffer_load_dwordx4 v[16:19], v7, s[24:27], 0 offen
    buffer_load_dwordx4 v[20:23], v5, s[24:27], 0 offen
    buffer_load_dwordx4 v[24:27], v5, s[24:27], 0 offen offset:2032
    buffer_load_dwordx4 v[28:31], v5, s[24:27], 0 offen offset:2048
    buffer_load_dwordx4 v[32:35], v5, s[20:23], 0 offen
    buffer_load_dwordx4 v[36:39], v5, s[20:23], 0 offen offset:2048
    s_add_u32 s44, s41, {X0T}
    s_add_u32 s45, s44, 4096
    s_mov_b32 s46, {ST0}
    s_mov_b32 s47, {ST0+8192}
    v_lshlrev_b32 v8, 1, v0
    v_lshlrev_b32 v9, 3, v0''')
    for i in range(8):
        e(f'buffer_load_ushort v{128+i}, v8, s[20:23], s44 offen offset:{512*i}\nbuffer_load_ushort v{152+i}, v8, s[20:23], s45 offen offset:{512*i}')
    for i in range(8):
        e(f'buffer_load_dwordx2 v[{136+2*i}:{137+2*i}], v9, s[20:23], s{46+i//4} offen offset:{2048*(i%2)}')
        if i % 2 == 1: e(f's_add_u32 s{46+i//4}, s{46+i//4}, 4096')
    e(f'''v_mov_b64 v[40:41], 0
    v_mov_b64 v[42:43], 0
    v_bfe_u32 v10, v0, 2, 4
    v_and_b32 v11, 3, v0
    v_min_u32 v11, 2, v11
    v_mul_u32_u24 v10, {HS}, v10
    v_lshl_add_u32 v10, v11, 4, v10
    v_add_u32 v10, {HB}, v10
    ds_write_b128 v10, v[40:43]
    v_mul_u32_u24 v10, {URP}, v3
    v_lshl_add_u32 v11, v2, 4, v10
    ds_write_b128 v11, v[40:43] offset:{URB+5120}
    v_and_b32 v11, 31, v0
    v_lshl_add_u32 v11, v11, 4, v10
    ds_write_b128 v11, v[40:43] offset:{URB+5120+2048}
    v_lshrrev_b32 v11, 2, v2
    v_mul_u32_u24 v11, 80, v11
    v_add_u32 v10, v10, v11
    v_and_b32 v11, 3, v0
    v_lshl_add_u32 v10, v11, 4, v10
    v_mul_u32_u24 v12, {8*HS}, v3
    v_lshl_add_u32 v12, v2, 4, v12
    v_add_u32 v12, {HB}, v12''')
    for i in range(2):
        D = 16+8*i
        e.stamp()
        e(f's_waitcnt vmcnt({28-2*i})')
        e.stamp()
        T = 44+18*i
        for k in range(6): e(f'v_alignbit_b32 v{T+k}, v{D+k+1}, v{D+k}, 16\nv_alignbit_b32 v{T+6+k}, v{D+k+2}, v{D+k+1}, 16\nv_mov_b32 v{T+12+k}, v{D+1+k}')
        src = {0:T, 4:T+2, 2:T+6, 6:T+8, 1:T+12, 5:T+14, 3:D+2, 7:D+4}
        for r in (3,7,0,4,2,6,1,5): e(f'ds_write_b128 v12, v[{src[r]}:{src[r]+3}] offset:{r*HS+48+2048*i}')
    e(f'''s_waitcnt vmcnt(24)
    ds_write_b128 v10, v[32:35] offset:{URB}
    ds_write_b128 v10, v[36:39] offset:{URB+2560}
    s_lshr_b32 s48, s3, 1
    s_and_b32 s49, s3, 1
    v_and_b32 v10, 7, v0
    v_mul_u32_u24 v10, {HS}, v10
    v_bfe_u32 v11, v0, 3, 3
    v_lshl_add_u32 v10, v11, 4, v10
    v_bfe_u32 v12, v0, 5, 1
    v_mul_u32_u24 v11, 48, v12
    v_sub_u32 v10, v10, v11
    s_mul_i32 s50, s48, {8*HS}
    s_add_u32 s50, s50, {HB}
    v_add_u32 v10, s50, v10
    v_and_b32 v11, 31, v0
    v_sub_u32 v11, 31, v11
    v_mul_u32_u24 v11, 80, v11
    v_lshl_add_u32 v11, v12, 4, v11
    s_mul_i32 s50, s48, {URP}
    s_add_u32 s50, s50, {URB}
    s_xor_b32 s51, s49, 1
    s_mul_i32 s52, s51, 2560
    s_add_u32 s52, s52, s50
    v_add_u32 v13, s52, v11
    s_mul_i32 s52, s51, 1280
    s_add_u32 s52, s52, s50
    v_add_u32 v14, s52, v11
    s_lshl_b32 s52, s51, 10
    v_add_u32 v15, s52, v10
    s_waitcnt lgkmcnt(0)
    s_barrier''')
    e.stamp()
    PD = 5
    def rd(st):
        b = 16 + 8*(st % PD)
        hv, uv = ('v10', 'v13') if st < 64 else ('v15', 'v14')
        e(f'ds_read_b128 v[{b}:{b+3}], {uv} offset:{80*(st//2)+32*(st%2)}\nds_read_b128 v[{b+4}:{b+7}], {hv} offset:{32*st}')
    for st in range(PD-1): rd(st)
    for st in range(96):
        if st+PD-1 < 96: rd(st+PD-1)
        rem = min(PD-1, 95-st)
        e(f's_waitcnt lgkmcnt({2*rem})')
        b = 16 + 8*(st % PD); c = 64 if st < 64 else 80
        cin = '0' if st in (0, 64) else f'v[{c}:{c+15}]'
        e(f'v_mfma_f32_32x32x16_bf16 v[{c}:{c+15}], v[{b}:{b+3}], v[{b+4}:{b+7}], {cin}')
    e.stamp()
    e(f'''v_and_b32 v10, 31, v0
    v_lshlrev_b32 v10, 2, v10
    v_lshl_add_u32 v10, v12, 9, v10
    s_mul_i32 s50, s48, 12288
    s_add_u32 s50, s50, {YA}
    v_add_u32 v10, s50, v10
    s_lshl_b32 s52, s51, 12
    v_add_u32 v11, s52, v10
    s_cmp_eq_u32 s49, 0
    s_nop 7
    s_cbranch_scc1 K1_a''')
    for i in range(8): e(f'v_pk_add_f32 v[{80+2*i}:{81+2*i}], v[{80+2*i}:{81+2*i}], v[{64+2*i}:{65+2*i}]')
    e('s_branch K1_b\nK1_a:')
    for r in range(16): e(f'ds_write_b32 v10, v{64+r} offset:{(8*(r//4)+r%4)*128}')
    e('K1_b:')
    for r in range(16): e(f'ds_write_b32 v11, v{80+r} offset:{4096+(8*(r//4)+r%4)*128}')
    e(f'''v_lshlrev_b32 v10, 2, v0
    v_sub_u32 v11, 255, v0
    v_lshrrev_b32 v12, 5, v11
    v_mul_u32_u24 v12, 80, v12
    v_and_b32 v11, 31, v11
    v_lshl_add_u32 v11, v11, 1, v12
    s_lshl_b32 s44, s43, 16
    s_and_b32 s45, s43, 0xffff0000
    s_mov_b32 s47, 0xffff0000
    s_lshr_b32 s50, s40, 2
    s_lshl_b32 s50, s50, 15
    s_and_b32 s51, s40, 3
    s_lshl_b32 s51, s51, 2
    s_add_u32 s50, s50, s51
    s_add_u32 s51, s50, {X1C}
    s_add_u32 s50, s50, {YC}
    v_lshlrev_b32 v13, 4, v0
    s_waitcnt lgkmcnt(0)
    s_barrier''')
    e.stamp()
    for i in range(8):
        e(f'''ds_read_b32 v{16+2*i}, v10 offset:{YA+1024*i}
        ds_read_b32 v{17+2*i}, v10 offset:{YA+12288+1024*i}
        ds_read_u16 v{48+2*i}, v11 offset:{URB+640*(7-i)}
        ds_read_u16 v{49+2*i}, v11 offset:{URB+URP+640*(7-i)}''')
        if i >= 4: e(f'ds_read_b32 v{24+2*i}, v10 offset:{YA+4096+1024*i}\nds_read_b32 v{25+2*i}, v10 offset:{YA+12288+4096+1024*i}')
        if i % 2 == 1: e('s_waitcnt lgkmcnt(0)')
    e('s_waitcnt vmcnt(0)')
    e.stamp()
    for i in range(8):
        y = 16+2*i; u = 48+2*i; st = 136+2*i
        if i >= 4: e(f'v_pk_add_f32 v[{y}:{y+1}], v[{y}:{y+1}], v[{y+8}:{y+9}]'.replace(f'v[{y+8}:{y+9}]', f'v[{24+2*i}:{25+2*i}]'))
        e(f'''v_lshlrev_b32 v{u}, 16, v{u}
        v_lshlrev_b32 v{u+1}, 16, v{u+1}
        v_fmac_f32 v{y}, s44, v{u}
        v_fmac_f32 v{y+1}, s45, v{u+1}
        v_cvt_pk_bf16_f32 v{64+i}, v{y}, v{y+1}
        v_lshlrev_b32 v4, 16, v{128+i}
        v_lshlrev_b32 v5, 16, v{152+i}
        v_lshlrev_b32 v6, 16, v{64+i}
        v_and_b32 v7, s47, v{64+i}
        v_sub_f32 v8, v4, v{st}
        v_sub_f32 v9, v5, v{st}
        v_mul_f32 v6, v6, v{st+1}
        v_mul_f32 v7, v7, v{st+1}
        v_fma_f32 v4, v8, v6, v4
        v_fma_f32 v5, v9, v7, v5
        v_cvt_pk_bf16_f32 v{72+i}, v4, v5
        buffer_store_dword v{64+i}, v13, s[20:23], s50 offen
        buffer_store_dword v{72+i}, v13, s[20:23], s51 offen
        s_add_u32 s50, s50, 4096
        s_add_u32 s51, s51, 4096''')
    e.stamp()
    if os.environ.get('STAMP'): e('s_waitcnt vmcnt(0)')
    e.dump('K1')
    e('K1_end:\ns_endpgm')
    return e.l, 160, 0
```

```python
import os
from asmlib import *
from k01 import *
K2_LDS = 98304 + 4*4352
def swap2(e, a, b, op, oa, ob):
    e(f'v_permlane32_swap_b32 v{a}, v{b}\n{op} v{oa}, v{a}, v{b}\nv_mov_b32 v{ob}, v{oa}\nv_permlane32_swap_b32 v{oa}, v{ob}')
def K2(layer):
    L = f'K2{layer}'
    fly = layer == 1
    XIN = X2C if fly else X1C
    e = A()
    e(f'''s_cmp_ge_u32 s2, 256
    s_cbranch_scc1 {L}_end
    s_load_dwordx2 s[18:19], s[0:1], 96
    s_and_b32 s40, s2, 3
    s_lshl_b32 s40, s40, 2
    s_bfe_u32 s41, s2, 0x20003
    s_add_u32 s40, s40, s41
    s_bfe_u32 s41, s2, 0x10002
    s_lshl_b32 s41, s41, 3
    s_lshr_b32 s42, s2, 5
    s_add_u32 s41, s41, s42
    v_lshrrev_b32 v1, 6, v0
    v_and_b32 v2, 63, v0
    v_and_b32 v3, 31, v0
    v_readfirstlane_b32 s3, v1
    v_bfe_u32 v4, v0, 5, 1
    v_lshlrev_b32 v5, 4, v2
    v_lshlrev_b32 v6, 4, v3
    v_lshl_add_u32 v6, v4, 15, v6
    s_lshl_b32 s43, s40, 2
    s_add_u32 s43, s43, s3
    s_lshl_b32 s44, s43, 9
    s_mul_i32 s45, s41, 98304
    s_mul_i32 s46, s3, 3072
    s_add_u32 s45, s45, s46
    s_add_u32 s45, s45, {WQP}
    s_add_u32 s47, s44, {XIN}
    s_add_u32 s48, s44, {YC}
    s_add_u32 s49, s44, {X3C}
    s_waitcnt lgkmcnt(0)''')
    e.srd(20, 18, WS_SZ)
    e.stamp()
    if fly:
        e(f's_lshl_b32 s50, s43, 8\ns_add_u32 s50, s50, {ST2}\nv_lshlrev_b32 v7, 3, v3\nv_lshl_add_u32 v7, v4, 17, v7')
        for i in range(8):
            e(f'buffer_load_dwordx2 v[{96+2*i}:{97+2*i}], v7, s[20:23], s50 offen')
            if i < 7: e('s_add_u32 s50, s50, 16384')
    def areg(ks): return (128 + 8*(ks % 16)) if fly else 128+4*ks
    def loads(p):
        l = ['s_mov_b32 m0, s46\nbuffer_load_dwordx4 v5, s[20:23], s45 offen lds', 'buffer_load_dwordx4 v5, s[20:23], s45 offen offset:1024 lds',
             'buffer_load_dwordx4 v5, s[20:23], s45 offen offset:2048 lds\ns_add_u32 s45, s45, 12288\ns_add_u32 s46, s46, 12288']
        for ks in range(4*p, 4*p+4):
            r = areg(ks)
            l.append(f'buffer_load_dwordx4 v[{r}:{r+3}], v6, s[20:23], s47 offen\ns_add_u32 s47, s47, 65536')
            if fly: l.append(f'buffer_load_dwordx4 v[{r+4}:{r+7}], v6, s[20:23], s48 offen\ns_add_u32 s48, s48, 65536')
        return l
    per = 11 if fly else 7
    LA = 3
    for p in range(LA):
        for x in loads(p): e(x)
    e(f'''v_mov_b32 v10, 0
    v_mov_b32 v11, 0
    v_mov_b32 v12, 0
    v_mov_b32 v13, 0
    s_mov_b32 s53, 0xffff0000''')
    e(f'v_lshlrev_b32 v14, 2, v4\nv_sub_u32 v14, v3, v14\nv_mov_b32 v15, 0x3f80\nv_mov_b32 v8, 0x3f800000')
    for s in range(2):
        for q in range(4):
            x = 16*s + 8*(q//2) + 2*(q % 2)
            e(f'v_cmp_eq_u32 vcc, {x}, v14\nv_cndmask_b32 v{112+4*s+q}, 0, v15, vcc\nv_cmp_eq_u32 vcc, {x+1}, v14\nv_cndmask_b32 v{112+4*s+q}, v{112+4*s+q}, v8, vcc')
    if fly:
        e(f's_waitcnt vmcnt({LA*per})')
        for i in range(1, 8): e(f'v_pk_add_f32 v[96:97], v[96:97], v[{96+2*i}:{97+2*i}]')
        swap2(e, 96, 97, 'v_add_f32', 98, 99)
        e('''v_mul_f32 v98, 0x3b000000, v98
        v_mul_f32 v99, 0x3b000000, v99
        v_fma_f32 v99, -v98, v98, v99
        v_max_f32 v99, 0, v99
        v_add_f32 v99, 0x3727c5ac, v99
        v_rsq_f32 v120, v99
        s_nop 0
        v_mul_f32 v122, v98, v120
        v_sub_f32 v122, 0, v122''')
    ACC = [16, 32, 48]
    BF = [64, 76, 88]
    def rdB(ks):
        b = BF[ks % 3]
        for j in range(3): e(f'ds_read_b128 v[{b+4*j}:{b+4*j+3}], v{5 if ks < 16 else 9} offset:{(ks % 16)*3072+1024*j}')
    def conv(ks):
        r = areg(ks); l = []
        for j in range(4):
            t = 100 + 6*(j % 2)
            if fly:
                l += [f'v_lshlrev_b32 v{t}, 16, v{r+j}', f'v_and_b32 v{t+1}, s53, v{r+j}', f'v_lshlrev_b32 v{t+2}, 16, v{r+4+j}', f'v_and_b32 v{t+3}, s53, v{r+4+j}',
                      f'v_fma_f32 v{t+4}, v{t}, v120, v122', f'v_fma_f32 v{t+5}, v{t+1}, v120, v122', f'v_fmac_f32 v{t}, v{t+4}, v{t+2}', f'v_fmac_f32 v{t+1}, v{t+5}, v{t+3}',
                      f'v_cvt_pk_bf16_f32 v{r+j}, v{t}, v{t+1}']
            else:
                l += [f'v_lshlrev_b32 v{t}, 16, v{r+j}', f'v_and_b32 v{t+1}, s53, v{r+j}']
            l += [f'v_add_f32 v10, v10, v{t}', f'v_add_f32 v11, v11, v{t+1}', f'v_fmac_f32 v12, v{t}, v{t}', f'v_fmac_f32 v13, v{t+1}, v{t+1}']
        if fly: l.append(f's_cmp_lg_u32 s41, {ks//2}\ns_cbranch_scc1 {L}_sk{ks}\nbuffer_store_dwordx4 v[{r}:{r+3}], v6, s[20:23], s49 offen ;cond\n{L}_sk{ks}:\ns_add_u32 s49, s49, 65536')
        return l
    e('v_add_u32 v9, 49152, v5')
    e.stamp()
    for p in range(8):
        cnt = per*min(LA-1, 7-p)
        e(f's_waitcnt vmcnt({cnt})\ns_barrier')
        if p in (0, 1, 4, 7): e.stamp()
        rdB(4*p); rdB(4*p+1)
        ld = loads(p+LA) if p+LA < 8 else []
        if fly:
            for x in conv(4*p): e(x)
        for ks in range(4*p, 4*p+4):
            r = areg(ks)
            if ks+2 < 4*p+4: rdB(ks+2)
            rem = min(2, 4*p+3-ks)
            e(f's_waitcnt lgkmcnt({3*rem})')
            b = BF[ks % 3]
            cv = (conv(ks+1) if ks+1 < 4*p+4 else []) if fly else conv(ks)
            n3 = (len(cv)+2)//3
            for j in range(3):
                c = ACC[j]; cin = '0' if ks == 0 else f'v[{c}:{c+15}]'
                e(f'v_mfma_f32_32x32x16_bf16 v[{c}:{c+15}], v[{b+4*j}:{b+4*j+3}], v[{r}:{r+3}], {cin}')
                if ld and (fly or j != 1 or len(ld) == per): e(ld.pop(0))
                for x in cv[j*n3:(j+1)*n3]: e(x)
        assert not ld
    return e, L, fly
def K2full(layer):
    e, L, fly = K2(layer)
    e.stamp()
    e(f's_mul_i32 s50, s41, 384\ns_add_u32 s50, s50, {WSUM}\nv_lshlrev_b32 v7, 4, v4')
    for i in range(12): e(f'buffer_load_dwordx4 v[{128+4*i}:{131+4*i}], v7, s[20:23], s50 offen offset:{32*i}')
    e('v_add_f32 v10, v10, v11\nv_add_f32 v12, v12, v13')
    swap2(e, 10, 12, 'v_add_f32', 64, 66)
    e('''v_mul_f32 v64, 0xbb000000, v64
    v_mul_f32 v66, 0x3b000000, v66
    v_fma_f32 v66, -v64, v64, v66
    v_max_f32 v66, 0, v66
    v_add_f32 v66, 0x3727c5ac, v66
    v_rsq_f32 v66, v66
    s_waitcnt vmcnt(0)
    v_mul_f32 v68, 0x3fb8aa3b, v66''')
    e.stamp()
    for t in (2, 1, 0):
        for i in range(8):
            c = 16+16*t+2*i; w = 128+16*t+2*i
            e(f'v_pk_fma_f32 v[{c}:{c+1}], v[{w}:{w+1}], v[64:65], v[{c}:{c+1}] op_sel_hi:[1,0,1]')
    for i in range(8): e(f'v_pk_mul_f32 v[{48+2*i}:{49+2*i}], v[{48+2*i}:{49+2*i}], v[66:67] op_sel_hi:[1,0]')
    for i in range(8): e(f'v_cvt_pk_bf16_f32 v{128+i}, v{48+2*i}, v{49+2*i}')
    e('v_mfma_f32_32x32x16_bf16 v[176:191], v[128:131], v[112:115], 0\nv_mfma_f32_32x32x16_bf16 v[176:191], v[132:135], v[116:119], v[176:191]')
    def softmax(c, out):
        e(f'''v_max3_f32 v70, v{c}, v{c+1}, v{c+2}
        v_max3_f32 v71, -v{c}, -v{c+1}, -v{c+2}
        v_max3_f32 v70, v70, v{c+3}, v{c+4}
        v_max3_f32 v71, v71, -v{c+3}, -v{c+4}
        v_max3_f32 v70, v70, v{c+5}, v{c+6}
        v_max3_f32 v71, v71, -v{c+5}, -v{c+6}
        v_max_f32 v70, v70, v{c+7}
        v_max_f32_e64 v71, v71, -v{c+7}''')
        swap2(e, 70, 71, 'v_max_f32', 72, 74)
        e('v_mul_f32_e64 v72, -v72, v68\nv_mul_f32_e64 v74, -v74, v68')
        for i in range(4):
            e(f'v_pk_fma_f32 v[{76+2*i}:{77+2*i}], v[{c+2*i}:{c+2*i+1}], v[68:69], v[72:73] op_sel_hi:[1,0,0]')
            e(f'v_pk_fma_f32 v[{84+2*i}:{85+2*i}], v[{c+2*i}:{c+2*i+1}], v[68:69], v[74:75] op_sel_hi:[1,0,0] neg_lo:[1,0,0] neg_hi:[1,0,0]')
        for i in range(16): e(f'v_exp_f32 v{76+i}, v{76+i}')
        e('''v_pk_add_f32 v[92:93], v[76:77], v[78:79]
        v_pk_add_f32 v[94:95], v[84:85], v[86:87]
        v_pk_add_f32 v[92:93], v[92:93], v[80:81]
        v_pk_add_f32 v[94:95], v[94:95], v[88:89]
        v_pk_add_f32 v[92:93], v[92:93], v[82:83]
        v_pk_add_f32 v[94:95], v[94:95], v[90:91]
        v_add_f32 v70, v92, v93
        v_add_f32 v71, v94, v95''')
        swap2(e, 70, 71, 'v_add_f32', 72, 74)
        e('v_rcp_f32 v72, v72\nv_rcp_f32 v74, v74')
        for i in range(8): e(f'v_pk_mul_f32 v[{76+2*i}:{77+2*i}], v[{76+2*i}:{77+2*i}], v[{72 if i < 4 else 74}:{73 if i < 4 else 75}] op_sel_hi:[1,0]')
        for i in range(8): e(f'v_cvt_pk_bf16_f32 v{out+i}, v{76+2*i}, v{77+2*i}')
    for h in range(2):
        softmax(32+8*h, 136+8*h)
        t = 200+16*h
        e(f'v_mfma_f32_32x32x16_bf16 v[{t}:{t+15}], v[{136+8*h}:{139+8*h}], v[112:115], 0\nv_mfma_f32_32x32x16_bf16 v[{t}:{t+15}], v[{140+8*h}:{143+8*h}], v[116:119], v[{t}:{t+15}]')
        if h == 0:
            e('v_cmp_gt_u32 vcc, 16, v3\nv_mov_b32 v96, 0x3f803f80')
            for i in range(8): e(f'v_cvt_pk_bf16_f32 v{192+i}, v{176+2*i}, v{177+2*i}')
            for i in range(8): e(f'v_cndmask_b32 v{152+i}, v96, v{192+i}, vcc\nv_cndmask_b32 v{160+i}, v{192+i}, v96, vcc')
    e(f's_lshl_b32 s50, s41, 18\ns_lshl_b32 s51, s43, 11\ns_add_u32 s50, s50, s51\ns_add_u32 s50, s50, {PQ}\ns_add_u32 s51, s50, 131072')
    softmax(16, 100)
    e('buffer_store_dwordx4 v[100:103], v5, s[20:23], s50 offen\nbuffer_store_dwordx4 v[104:107], v5, s[20:23], s50 offen offset:1024')
    for h in range(2):
        t = 200+16*h
        for i in range(8): e(f'v_cvt_pk_bf16_f32 v{168+i}, v{t+2*i}, v{t+2*i+1}'.replace('v168', 'v168') if h == 0 else f'v_cvt_pk_bf16_f32 v{232+i}, v{t+2*i}, v{t+2*i+1}')
        A_ = 168 if h == 0 else 232; c = 176 if h == 0 else 32
        e(f'v_mfma_f32_32x32x16_bf16 v[{c}:{c+15}], v[{A_}:{A_+3}], v[{152+8*h}:{155+8*h}], 0\nv_mfma_f32_32x32x16_bf16 v[{c}:{c+15}], v[{A_+4}:{A_+7}], v[{156+8*h}:{159+8*h}], v[{c}:{c+15}]')
    softmax(24, 128)
    e('buffer_store_dwordx4 v[128:131], v5, s[20:23], s51 offen\nbuffer_store_dwordx4 v[132:135], v5, s[20:23], s51 offen offset:1024')
    e.stamp()
    e(f'''v_mul_u32_u24 v96, 272, v4
    s_mul_i32 s50, s3, 4352
    s_add_u32 s50, s50, 98304
    v_add_u32 v96, s50, v96
    v_min_u32 v97, 16, v3
    v_lshl_add_u32 v97, v97, 4, v96
    v_xor_b32 v98, 16, v3
    v_min_u32 v98, 16, v98
    v_lshl_add_u32 v98, v98, 4, v96''')
    for g in range(4): e(f'ds_write_b128 v97, v[{176+4*g}:{179+4*g}] offset:{g*544}')
    for g in range(4): e(f'ds_write_b128 v98, v[{32+4*g}:{35+4*g}] offset:{2176+g*544}')
    e(f'''v_lshlrev_b32 v96, 2, v0
    v_add_u32 v97, 98304, v96
    s_mul_i32 s50, s41, 4352
    s_add_u32 s50, s50, {STATE+layer*STATE_L}
    s_waitcnt lgkmcnt(0)
    s_barrier''')
    e.stamp()
    for i in range(5):
        for w in range(4): e(f'ds_read_b32 v{100+4*i+w}, v97 offset:{1024*i+4352*w}')
        if i in (2, 4): e('s_waitcnt lgkmcnt(0)')
    for i in range(5): e(f'v_add_f32 v{100+4*i}, v{100+4*i}, v{101+4*i}\nv_add_f32 v{102+4*i}, v{102+4*i}, v{103+4*i}\nv_add_f32 v{100+4*i}, v{100+4*i}, v{102+4*i}')
    for i in range(4): e(f'buffer_atomic_add_f32 v{100+4*i}, v96, s[20:23], s50 offen offset:{1024*i}')
    e(f'''s_cmp_lg_u32 s3, 0
    s_cbranch_scc1 {L}_end
    s_add_u32 s50, s50, 4096
    s_waitcnt lgkmcnt(0)
    buffer_atomic_add_f32 v116, v96, s[20:23], s50 offen''')
    e.stamp()
    if os.environ.get('STAMP'): e('s_waitcnt vmcnt(0)')
    e.dump(L)
    e(f'{L}_end:\ns_endpgm')
    return e.l, 256, 0

def K3(layer):
    L = f'K3{layer}'; last = layer == 1
    e = A()
    e(f'''s_cmp_ge_u32 s2, 256
    s_cbranch_scc1 {L}_end
    s_load_dwordx2 s[18:19], s[0:1], 96
    s_load_dwordx2 s[16:17], s[0:1], 80
    s_and_b32 s40, s2, 7
    s_lshl_b32 s40, s40, 3
    s_lshr_b32 s41, s2, 5
    s_add_u32 s40, s40, s41
    s_bfe_u32 s41, s2, 0x20003
    v_lshrrev_b32 v1, 6, v0
    v_and_b32 v2, 63, v0
    v_and_b32 v3, 31, v0
    v_readfirstlane_b32 s3, v1
    v_bfe_u32 v4, v0, 5, 1
    v_lshlrev_b32 v5, 4, v2
    v_min_u32 v6, 16, v3
    v_lshlrev_b32 v6, 4, v6
    v_mul_u32_u24 v7, 272, v4
    v_add_u32 v6, v6, v7
    s_mul_i32 s42, s3, {8*2176}
    s_add_u32 s42, s42, {STATE+layer*STATE_L}
    s_lshl_b32 s43, s3, 20
    s_lshl_b32 s44, s40, 11
    s_add_u32 s43, s43, s44
    s_add_u32 s43, s43, {PQ}
    s_lshl_b32 s44, s41, 2
    s_add_u32 s44, s44, s3
    s_lshl_b32 s45, s44, 15
    s_add_u32 s45, s45, {WOP}
    s_waitcnt lgkmcnt(0)''')
    e.srd(20, 18, WS_SZ)
    e.stamp()
    for h in range(8):
        for g in range(4): e(f'buffer_load_dwordx4 v[{64+16*h+4*g}:{67+16*h+4*g}], v6, s[20:23], s42 offen offset:{544*g}')
        for s in range(2): e(f'buffer_load_dwordx4 v[{192+8*h+4*s}:{195+8*h+4*s}], v5, s[20:23], s43 offen offset:{1024*s}')
        if h < 7: e('s_add_u32 s42, s42, 2176\ns_add_u32 s43, s43, 131072')
    def wo(k0, k1):
        for ks in range(k0, k1):
            e(f'buffer_load_dwordx4 a[{4*ks}:{4*ks+3}], v5, s[20:23], s45 offen offset:{1024*(ks%4)}')
            if ks % 4 == 3: e('s_add_u32 s45, s45, 4096')
    wo(0, 12)
    e(f'''s_lshl_b32 s46, s44, 17
    s_lshl_b32 s47, s40, 9
    s_add_u32 s46, s46, s47
    s_add_u32 s47, s46, {X3C if last else X1C}
    s_add_u32 s46, s46, {X2C}
    v_lshlrev_b32 v8, 4, v3
    v_lshl_add_u32 v9, v4, 3, v8
    v_lshl_add_u32 v8, v4, 15, v8
    s_lshl_b32 s48, s3, 13
    v_add_u32 v10, s48, v5''')
    e.stamp()
    extra = {0:(12,16), 1:(16,20), 2:(20,26), 3:(26,32)}
    issued = 60
    def fin(h):
        c = 16+16*(h % 2)
        e(f'v_add_f32 v12, 0x358637bd, v{c+8}\nv_rcp_f32 v12, v12')
        for i in range(4): e(f'v_pk_mul_f32 v[{c+2*i}:{c+2*i+1}], v[{c+2*i}:{c+2*i+1}], v[12:13] op_sel_hi:[1,0]')
        for i in range(4): e(f'v_cvt_pk_bf16_f32 v{56+4*(h%2)+i}, v{c+2*i}, v{c+2*i+1}')
        e(f'ds_write_b128 v10, v[{56+4*(h%2)}:{59+4*(h%2)}] offset:{1024*h}')
    for h in range(8):
        e(f's_waitcnt vmcnt({issued-6*(h+1)})')
        if h in (0,4): e.stamp()
        b = 64+16*h
        for i in range(8): e(f'v_cvt_pk_bf16_f32 v{b+i}, v{b+2*i}, v{b+2*i+1}')
        c = 16+16*(h % 2)
        e(f'v_mfma_f32_32x32x16_bf16 v[{c}:{c+15}], v[{b}:{b+3}], v[{192+8*h}:{195+8*h}], 0\nv_mfma_f32_32x32x16_bf16 v[{c}:{c+15}], v[{b+4}:{b+7}], v[{196+8*h}:{199+8*h}], v[{c}:{c+15}]')
        if h in extra: wo(*extra[h]); issued += extra[h][1]-extra[h][0]
        if h == 3:
            for g in range(4):
                e(f'buffer_load_dwordx2 v[{48+2*g}:{49+2*g}], v9, s[20:23], s47 offen\ns_add_u32 s47, s47, 32768')
            issued += 4
        if h > 0: fin(h-1)
    fin(7)
    e.stamp()
    e('s_waitcnt lgkmcnt(0)\ns_barrier')
    e.stamp()
    PD = 6
    def rd(ks): e(f'ds_read_b128 v[{64+4*(ks%PD)}:{67+4*(ks%PD)}], v5 offset:{1024*ks}')
    for ks in range(PD-1): rd(ks)
    for ks in range(32):
        if ks+PD-1 < 32: rd(ks+PD-1)
        w = f's_waitcnt lgkmcnt({min(PD-1, 31-ks)})'
        if ks in (0, 12, 16, 20, 26): w += f' vmcnt({ {0:24,12:20,16:16,20:10,26:4}[ks] })'
        e(w)
        e(f'v_mfma_f32_32x32x16_bf16 v[16:31], a[{4*ks}:{4*ks+3}], v[{64+4*(ks%PD)}:{67+4*(ks%PD)}], {"0" if ks == 0 else "v[16:31]"}')
    e.stamp()
    e('s_mov_b32 s53, 0xffff0000\ns_mov_b32 s52, 0x3f803f80\ns_waitcnt vmcnt(0)')
    for i in range(8): e(f'v_lshlrev_b32 v{32+2*i}, 16, v{48+i}\nv_and_b32 v{33+2*i}, s53, v{48+i}')
    for i in range(8): e(f'v_pk_add_f32 v[{16+2*i}:{17+2*i}], v[{16+2*i}:{17+2*i}], v[{32+2*i}:{33+2*i}]')
    for i in range(8): e(f'v_cvt_pk_bf16_f32 v{32+i}, v{16+2*i}, v{17+2*i}')
    if not last:
        e('v_mov_b32 v12, 0\nv_mov_b32 v13, 0')
        for i in range(8): e(f'v_dot2c_f32_bf16 v12, s52, v{32+i}\nv_dot2c_f32_bf16 v13, v{32+i}, v{32+i}')
    e('v_permlane32_swap_b32 v32, v34\nv_permlane32_swap_b32 v33, v35\nv_permlane32_swap_b32 v36, v38\nv_permlane32_swap_b32 v37, v39')
    if last:
        e.srd(24, 16, 0x200000)
        e(f'''s_lshl_b32 s46, s40, 15
        s_lshl_b32 s47, s44, 6
        s_add_u32 s46, s46, s47
        v_lshlrev_b32 v8, 10, v3
        v_lshl_add_u32 v8, v4, 4, v8
        buffer_store_dwordx4 v[32:35], v8, s[24:27], s46 offen
        buffer_store_dwordx4 v[36:39], v8, s[24:27], s46 offen offset:32''')
    else:
        e(f'''buffer_store_dwordx4 v[32:35], v8, s[20:23], s46 offen
        s_add_u32 s46, s46, 65536
        buffer_store_dwordx4 v[36:39], v8, s[20:23], s46 offen''')
        swap2(e, 12, 13, 'v_add_f32', 14, 15)
        e(f'''s_lshl_b32 s46, s44, 14
        s_lshl_b32 s47, s40, 8
        s_add_u32 s46, s46, s47
        s_add_u32 s46, s46, {ST2}
        v_lshlrev_b32 v8, 3, v3
        buffer_store_dwordx2 v[14:15], v8, s[20:23], s46 offen''')
    e.stamp()
    if os.environ.get('STAMP'): e('s_waitcnt vmcnt(0)')
    e.dump(L)
    e(f'{L}_end:\ns_endpgm')
    return e.l, 256, 128
```

```python
import os
from asmlib import *
from k01 import *
K2_LDS = 98304 + 4*4352
def swap2(e, a, b, op, oa, ob):
    e(f'v_permlane32_swap_b32 v{a}, v{b}\n{op} v{oa}, v{a}, v{b}\nv_mov_b32 v{ob}, v{oa}\nv_permlane32_swap_b32 v{oa}, v{ob}')
def K2(layer):
    L = f'K2{layer}'
    fly = False
    XIN = X3C if layer == 1 else X1C
    e = A()
    e(f'''s_cmp_ge_u32 s2, 256
    s_cbranch_scc1 {L}_end
    s_load_dwordx2 s[18:19], s[0:1], 96
    s_and_b32 s40, s2, 3
    s_lshl_b32 s40, s40, 2
    s_bfe_u32 s41, s2, 0x20003
    s_add_u32 s40, s40, s41
    s_bfe_u32 s41, s2, 0x10002
    s_lshl_b32 s41, s41, 3
    s_lshr_b32 s42, s2, 5
    s_add_u32 s41, s41, s42
    v_lshrrev_b32 v1, 6, v0
    v_and_b32 v2, 63, v0
    v_and_b32 v3, 31, v0
    v_readfirstlane_b32 s3, v1
    v_bfe_u32 v4, v0, 5, 1
    v_lshlrev_b32 v5, 4, v2
    v_lshlrev_b32 v6, 4, v3
    v_lshl_add_u32 v6, v4, 15, v6
    s_lshl_b32 s43, s40, 2
    s_add_u32 s43, s43, s3
    s_lshl_b32 s44, s43, 9
    s_mul_i32 s45, s41, 98304
    s_mul_i32 s46, s3, 3072
    s_add_u32 s45, s45, s46
    s_add_u32 s45, s45, {WQP}
    s_add_u32 s47, s44, {XIN}
    s_add_u32 s48, s44, {YC}
    s_add_u32 s49, s44, {X3C}
    s_waitcnt lgkmcnt(0)''')
    e.srd(20, 18, WS_SZ)
    e.stamp()
    if fly:
        e(f's_lshl_b32 s50, s43, 8\ns_add_u32 s50, s50, {ST2}\nv_lshlrev_b32 v7, 3, v3\nv_lshl_add_u32 v7, v4, 17, v7')
        for i in range(8):
            e(f'buffer_load_dwordx2 v[{96+2*i}:{97+2*i}], v7, s[20:23], s50 offen')
            if i < 7: e('s_add_u32 s50, s50, 16384')
    def areg(ks): return (128 + 8*(ks % 16)) if fly else 128+4*ks
    def loads(p):
        l = ['s_mov_b32 m0, s46\nbuffer_load_dwordx4 v5, s[20:23], s45 offen lds', 'buffer_load_dwordx4 v5, s[20:23], s45 offen offset:1024 lds',
             'buffer_load_dwordx4 v5, s[20:23], s45 offen offset:2048 lds\ns_add_u32 s45, s45, 12288\ns_add_u32 s46, s46, 12288']
        for ks in range(4*p, 4*p+4):
            r = areg(ks)
            l.append(f'buffer_load_dwordx4 v[{r}:{r+3}], v6, s[20:23], s47 offen\ns_add_u32 s47, s47, 65536')
            if fly: l.append(f'buffer_load_dwordx4 v[{r+4}:{r+7}], v6, s[20:23], s48 offen\ns_add_u32 s48, s48, 65536')
        return l
    per = 11 if fly else 7
    LA = 3
    for p in range(LA):
        for x in loads(p): e(x)
    e(f'''v_mov_b32 v10, 0
    v_mov_b32 v11, 0
    v_mov_b32 v12, 0
    v_mov_b32 v13, 0
    s_mov_b32 s53, 0xffff0000''')
    e(f'v_lshlrev_b32 v14, 2, v4\nv_sub_u32 v14, v3, v14\nv_mov_b32 v15, 0x3f80\nv_mov_b32 v8, 0x3f800000')
    for s in range(2):
        for q in range(4):
            x = 16*s + 8*(q//2) + 2*(q % 2)
            e(f'v_cmp_eq_u32 vcc, {x}, v14\nv_cndmask_b32 v{112+4*s+q}, 0, v15, vcc\nv_cmp_eq_u32 vcc, {x+1}, v14\nv_cndmask_b32 v{112+4*s+q}, v{112+4*s+q}, v8, vcc')
    if fly:
        e(f's_waitcnt vmcnt({LA*per})')
        for i in range(1, 8): e(f'v_pk_add_f32 v[96:97], v[96:97], v[{96+2*i}:{97+2*i}]')
        swap2(e, 96, 97, 'v_add_f32', 98, 99)
        e('''v_mul_f32 v98, 0x3b000000, v98
        v_mul_f32 v99, 0x3b000000, v99
        v_fma_f32 v99, -v98, v98, v99
        v_max_f32 v99, 0, v99
        v_add_f32 v99, 0x3727c5ac, v99
        v_rsq_f32 v120, v99
        s_nop 0
        v_mul_f32 v122, v98, v120
        v_sub_f32 v122, 0, v122''')
    ACC = [16, 32, 48]
    BF = [64, 76, 88]
    def rdB(ks):
        b = BF[ks % 3]
        for j in range(3): e(f'ds_read_b128 v[{b+4*j}:{b+4*j+3}], v{5 if ks < 16 else 9} offset:{(ks % 16)*3072+1024*j}')
    def conv(ks):
        r = areg(ks); l = []
        for j in range(4):
            t = 100 + 6*(j % 2)
            if fly:
                l += [f'v_lshlrev_b32 v{t}, 16, v{r+j}', f'v_and_b32 v{t+1}, s53, v{r+j}', f'v_lshlrev_b32 v{t+2}, 16, v{r+4+j}', f'v_and_b32 v{t+3}, s53, v{r+4+j}',
                      f'v_fma_f32 v{t+4}, v{t}, v120, v122', f'v_fma_f32 v{t+5}, v{t+1}, v120, v122', f'v_fmac_f32 v{t}, v{t+4}, v{t+2}', f'v_fmac_f32 v{t+1}, v{t+5}, v{t+3}',
                      f'v_cvt_pk_bf16_f32 v{r+j}, v{t}, v{t+1}']
            else:
                l += [f'v_lshlrev_b32 v{t}, 16, v{r+j}', f'v_and_b32 v{t+1}, s53, v{r+j}']
            l += [f'v_add_f32 v10, v10, v{t}', f'v_add_f32 v11, v11, v{t+1}', f'v_fmac_f32 v12, v{t}, v{t}', f'v_fmac_f32 v13, v{t+1}, v{t+1}']
        if fly: l.append(f's_cmp_lg_u32 s41, {ks//2}\ns_cbranch_scc1 {L}_sk{ks}\nbuffer_store_dwordx4 v[{r}:{r+3}], v6, s[20:23], s49 offen ;cond\n{L}_sk{ks}:\ns_add_u32 s49, s49, 65536')
        return l
    e('v_add_u32 v9, 49152, v5')
    e.stamp()
    for p in range(8):
        cnt = per*min(LA-1, 7-p)
        e(f's_waitcnt vmcnt({cnt})\ns_barrier')
        if p in (0, 1, 4, 7): e.stamp()
        rdB(4*p); rdB(4*p+1)
        ld = loads(p+LA) if p+LA < 8 else []
        if fly:
            for x in conv(4*p): e(x)
        for ks in range(4*p, 4*p+4):
            r = areg(ks)
            if ks+2 < 4*p+4: rdB(ks+2)
            rem = min(2, 4*p+3-ks)
            e(f's_waitcnt lgkmcnt({3*rem})')
            b = BF[ks % 3]
            cv = (conv(ks+1) if ks+1 < 4*p+4 else []) if fly else conv(ks)
            n3 = (len(cv)+2)//3
            for j in range(3):
                c = ACC[j]; cin = '0' if ks == 0 else f'v[{c}:{c+15}]'
                e(f'v_mfma_f32_32x32x16_bf16 v[{c}:{c+15}], v[{b+4*j}:{b+4*j+3}], v[{r}:{r+3}], {cin}')
                if ld and (fly or j != 1 or len(ld) == per): e(ld.pop(0))
                for x in cv[j*n3:(j+1)*n3]: e(x)
        assert not ld
    return e, L, fly
def K2full(layer):
    e, L, fly = K2(layer)
    e.stamp()
    e(f's_mul_i32 s50, s41, 384\ns_add_u32 s50, s50, {WSUM}\nv_lshlrev_b32 v7, 4, v4')
    for i in range(12): e(f'buffer_load_dwordx4 v[{128+4*i}:{131+4*i}], v7, s[20:23], s50 offen offset:{32*i}')
    e('v_add_f32 v10, v10, v11\nv_add_f32 v12, v12, v13')
    swap2(e, 10, 12, 'v_add_f32', 64, 66)
    e('''v_mul_f32 v64, 0xbb000000, v64
    v_mul_f32 v66, 0x3b000000, v66
    v_fma_f32 v66, -v64, v64, v66
    v_max_f32 v66, 0, v66
    v_add_f32 v66, 0x3727c5ac, v66
    v_rsq_f32 v66, v66
    s_waitcnt vmcnt(0)
    v_mul_f32 v68, 0x3fb8aa3b, v66''')
    e.stamp()
    for t in (2, 1, 0):
        for i in range(8):
            c = 16+16*t+2*i; w = 128+16*t+2*i
            e(f'v_pk_fma_f32 v[{c}:{c+1}], v[{w}:{w+1}], v[64:65], v[{c}:{c+1}] op_sel_hi:[1,0,1]')
    for i in range(8): e(f'v_pk_mul_f32 v[{48+2*i}:{49+2*i}], v[{48+2*i}:{49+2*i}], v[66:67] op_sel_hi:[1,0]')
    for i in range(8): e(f'v_cvt_pk_bf16_f32 v{128+i}, v{48+2*i}, v{49+2*i}')
    e('v_mfma_f32_32x32x16_bf16 v[176:191], v[128:131], v[112:115], 0\nv_mfma_f32_32x32x16_bf16 v[176:191], v[132:135], v[116:119], v[176:191]')
    def softmax(c, out):
        e(f'''v_max3_f32 v70, v{c}, v{c+1}, v{c+2}
        v_max3_f32 v71, -v{c}, -v{c+1}, -v{c+2}
        v_max3_f32 v70, v70, v{c+3}, v{c+4}
        v_max3_f32 v71, v71, -v{c+3}, -v{c+4}
        v_max3_f32 v70, v70, v{c+5}, v{c+6}
        v_max3_f32 v71, v71, -v{c+5}, -v{c+6}
        v_max_f32 v70, v70, v{c+7}
        v_max_f32_e64 v71, v71, -v{c+7}''')
        swap2(e, 70, 71, 'v_max_f32', 72, 74)
        e('v_mul_f32_e64 v72, -v72, v68\nv_mul_f32_e64 v74, -v74, v68')
        for i in range(4):
            e(f'v_pk_fma_f32 v[{76+2*i}:{77+2*i}], v[{c+2*i}:{c+2*i+1}], v[68:69], v[72:73] op_sel_hi:[1,0,0]')
            e(f'v_pk_fma_f32 v[{84+2*i}:{85+2*i}], v[{c+2*i}:{c+2*i+1}], v[68:69], v[74:75] op_sel_hi:[1,0,0] neg_lo:[1,0,0] neg_hi:[1,0,0]')
        for i in range(16): e(f'v_exp_f32 v{76+i}, v{76+i}')
        e('''v_pk_add_f32 v[92:93], v[76:77], v[78:79]
        v_pk_add_f32 v[94:95], v[84:85], v[86:87]
        v_pk_add_f32 v[92:93], v[92:93], v[80:81]
        v_pk_add_f32 v[94:95], v[94:95], v[88:89]
        v_pk_add_f32 v[92:93], v[92:93], v[82:83]
        v_pk_add_f32 v[94:95], v[94:95], v[90:91]
        v_add_f32 v70, v92, v93
        v_add_f32 v71, v94, v95''')
        swap2(e, 70, 71, 'v_add_f32', 72, 74)
        e('v_rcp_f32 v72, v72\nv_rcp_f32 v74, v74')
        for i in range(8): e(f'v_pk_mul_f32 v[{76+2*i}:{77+2*i}], v[{76+2*i}:{77+2*i}], v[{72 if i < 4 else 74}:{73 if i < 4 else 75}] op_sel_hi:[1,0]')
        for i in range(8): e(f'v_cvt_pk_bf16_f32 v{out+i}, v{76+2*i}, v{77+2*i}')
    for h in range(2):
        softmax(32+8*h, 136+8*h)
        t = 200+16*h
        e(f'v_mfma_f32_32x32x16_bf16 v[{t}:{t+15}], v[{136+8*h}:{139+8*h}], v[112:115], 0\nv_mfma_f32_32x32x16_bf16 v[{t}:{t+15}], v[{140+8*h}:{143+8*h}], v[116:119], v[{t}:{t+15}]')
        if h == 0:
            e('v_cmp_gt_u32 vcc, 16, v3\nv_mov_b32 v96, 0x3f803f80')
            for i in range(8): e(f'v_cvt_pk_bf16_f32 v{192+i}, v{176+2*i}, v{177+2*i}')
            for i in range(8): e(f'v_cndmask_b32 v{152+i}, v96, v{192+i}, vcc\nv_cndmask_b32 v{160+i}, v{192+i}, v96, vcc')
    e(f's_lshl_b32 s50, s41, 18\ns_lshl_b32 s51, s43, 11\ns_add_u32 s50, s50, s51\ns_add_u32 s50, s50, {PQ1 if layer else PQ}\ns_add_u32 s51, s50, 131072')
    softmax(16, 100)
    e('buffer_store_dwordx4 v[100:103], v5, s[20:23], s50 offen\nbuffer_store_dwordx4 v[104:107], v5, s[20:23], s50 offen offset:1024')
    for h in range(2):
        t = 200+16*h
        for i in range(8): e(f'v_cvt_pk_bf16_f32 v{168+i}, v{t+2*i}, v{t+2*i+1}'.replace('v168', 'v168') if h == 0 else f'v_cvt_pk_bf16_f32 v{232+i}, v{t+2*i}, v{t+2*i+1}')
        A_ = 168 if h == 0 else 232; c = 176 if h == 0 else 32
        e(f'v_mfma_f32_32x32x16_bf16 v[{c}:{c+15}], v[{A_}:{A_+3}], v[{152+8*h}:{155+8*h}], 0\nv_mfma_f32_32x32x16_bf16 v[{c}:{c+15}], v[{A_+4}:{A_+7}], v[{156+8*h}:{159+8*h}], v[{c}:{c+15}]')
    softmax(24, 128)
    e('buffer_store_dwordx4 v[128:131], v5, s[20:23], s51 offen\nbuffer_store_dwordx4 v[132:135], v5, s[20:23], s51 offen offset:1024')
    e.stamp()
    e(f'''v_mul_u32_u24 v96, 272, v4
    s_mul_i32 s50, s3, 4352
    s_add_u32 s50, s50, 98304
    v_add_u32 v96, s50, v96
    v_min_u32 v97, 16, v3
    v_lshl_add_u32 v97, v97, 4, v96
    v_xor_b32 v98, 16, v3
    v_min_u32 v98, 16, v98
    v_lshl_add_u32 v98, v98, 4, v96''')
    for g in range(4): e(f'ds_write_b128 v97, v[{176+4*g}:{179+4*g}] offset:{g*544}')
    for g in range(4): e(f'ds_write_b128 v98, v[{32+4*g}:{35+4*g}] offset:{2176+g*544}')
    e(f'''v_lshlrev_b32 v96, 2, v0
    v_add_u32 v97, 98304, v96
    s_mul_i32 s50, s41, 4352
    s_add_u32 s50, s50, {STATE+layer*STATE_L}
    s_waitcnt lgkmcnt(0)
    s_barrier''')
    e.stamp()
    for i in range(5):
        for w in range(4): e(f'ds_read_b32 v{100+4*i+w}, v97 offset:{1024*i+4352*w}')
        if i in (2, 4): e('s_waitcnt lgkmcnt(0)')
    for i in range(5): e(f'v_add_f32 v{100+4*i}, v{100+4*i}, v{101+4*i}\nv_add_f32 v{102+4*i}, v{102+4*i}, v{103+4*i}\nv_add_f32 v{100+4*i}, v{100+4*i}, v{102+4*i}')
    for i in range(4): e(f'buffer_atomic_add_f32 v{100+4*i}, v96, s[20:23], s50 offen offset:{1024*i}')
    e(f'''s_cmp_lg_u32 s3, 0
    s_cbranch_scc1 {L}_end
    s_add_u32 s50, s50, 4096
    s_waitcnt lgkmcnt(0)
    buffer_atomic_add_f32 v116, v96, s[20:23], s50 offen''')
    e.stamp()
    if os.environ.get('STAMP'): e('s_waitcnt vmcnt(0)')
    e.dump(L)
    e(f'{L}_end:\ns_endpgm')
    return e.l, 256, 0

def K3(layer):
    L = f'K3{layer}'; last = layer == 1
    e = A()
    e(f'''s_cmp_ge_u32 s2, 256
    s_cbranch_scc1 {L}_end
    s_load_dwordx2 s[18:19], s[0:1], 96
    s_load_dwordx2 s[16:17], s[0:1], 80
    s_and_b32 s40, s2, 7
    s_lshl_b32 s40, s40, 3
    s_lshr_b32 s41, s2, 5
    s_add_u32 s40, s40, s41
    s_bfe_u32 s41, s2, 0x20003
    v_lshrrev_b32 v1, 6, v0
    v_and_b32 v2, 63, v0
    v_and_b32 v3, 31, v0
    v_readfirstlane_b32 s3, v1
    v_bfe_u32 v4, v0, 5, 1
    v_lshlrev_b32 v5, 4, v2
    v_min_u32 v6, 16, v3
    v_lshlrev_b32 v6, 4, v6
    v_mul_u32_u24 v7, 272, v4
    v_add_u32 v6, v6, v7
    s_mul_i32 s42, s3, {8*2176}
    s_add_u32 s42, s42, {STATE+layer*STATE_L}
    s_lshl_b32 s43, s3, 20
    s_lshl_b32 s44, s40, 11
    s_add_u32 s43, s43, s44
    s_add_u32 s43, s43, {PQ1 if layer else PQ}
    s_lshl_b32 s44, s41, 2
    s_add_u32 s44, s44, s3
    s_lshl_b32 s45, s44, 15
    s_add_u32 s45, s45, {WOP}
    s_waitcnt lgkmcnt(0)''')
    e.srd(20, 18, WS_SZ)
    e.stamp()
    for h in range(8):
        for g in range(4): e(f'buffer_load_dwordx4 v[{64+16*h+4*g}:{67+16*h+4*g}], v6, s[20:23], s42 offen offset:{544*g}')
        for s in range(2): e(f'buffer_load_dwordx4 v[{192+8*h+4*s}:{195+8*h+4*s}], v5, s[20:23], s43 offen offset:{1024*s}')
        if h < 7: e('s_add_u32 s42, s42, 2176\ns_add_u32 s43, s43, 131072')
    def wo(k0, k1):
        for ks in range(k0, k1):
            e(f'buffer_load_dwordx4 a[{4*ks}:{4*ks+3}], v5, s[20:23], s45 offen offset:{1024*(ks%4)}')
            if ks % 4 == 3: e('s_add_u32 s45, s45, 4096')
    wo(0, 12)
    e(f'''s_lshl_b32 s46, s44, 17
    s_lshl_b32 s47, s40, 9
    s_add_u32 s46, s46, s47
    s_add_u32 s47, s46, {X3C if last else X1C}
    s_add_u32 s49, s46, {YC}
    s_add_u32 s46, s46, {X3C}
    v_lshlrev_b32 v8, 4, v3
    v_lshl_add_u32 v9, v4, 3, v8
    v_lshl_add_u32 v8, v4, 15, v8
    s_lshl_b32 s48, s3, 13
    v_add_u32 v10, s48, v5''')
    e.stamp()
    extra = {0:(12,16), 1:(16,20), 2:(20,26), 3:(26,32)}
    issued = 60
    def fin(h):
        c = 16+16*(h % 2)
        e(f'v_add_f32 v12, 0x358637bd, v{c+8}\nv_rcp_f32 v12, v12')
        for i in range(4): e(f'v_pk_mul_f32 v[{c+2*i}:{c+2*i+1}], v[{c+2*i}:{c+2*i+1}], v[12:13] op_sel_hi:[1,0]')
        for i in range(4): e(f'v_cvt_pk_bf16_f32 v{56+4*(h%2)+i}, v{c+2*i}, v{c+2*i+1}')
        e(f'ds_write_b128 v10, v[{56+4*(h%2)}:{59+4*(h%2)}] offset:{1024*h}')
    for h in range(8):
        e(f's_waitcnt vmcnt({issued-6*(h+1)})')
        if h in (0,4): e.stamp()
        b = 64+16*h
        for i in range(8): e(f'v_cvt_pk_bf16_f32 v{b+i}, v{b+2*i}, v{b+2*i+1}')
        c = 16+16*(h % 2)
        e(f'v_mfma_f32_32x32x16_bf16 v[{c}:{c+15}], v[{b}:{b+3}], v[{192+8*h}:{195+8*h}], 0\nv_mfma_f32_32x32x16_bf16 v[{c}:{c+15}], v[{b+4}:{b+7}], v[{196+8*h}:{199+8*h}], v[{c}:{c+15}]')
        if h in extra: wo(*extra[h]); issued += extra[h][1]-extra[h][0]
        if h == 3:
            for g in range(4):
                e(f'buffer_load_dwordx2 v[{48+2*g}:{49+2*g}], v9, s[20:23], s47 offen\ns_add_u32 s47, s47, 32768')
            issued += 4
            if not last:
                for g in range(4):
                    e(f'buffer_load_dwordx2 v[{88+2*g}:{89+2*g}], v9, s[20:23], s49 offen\ns_add_u32 s49, s49, 32768')
                issued += 4
        if h > 0: fin(h-1)
    fin(7)
    e.stamp()
    e('s_waitcnt lgkmcnt(0)\ns_barrier')
    e.stamp()
    PD = 6
    def rd(ks): e(f'ds_read_b128 v[{64+4*(ks%PD)}:{67+4*(ks%PD)}], v5 offset:{1024*ks}')
    for ks in range(PD-1): rd(ks)
    for ks in range(32):
        if ks+PD-1 < 32: rd(ks+PD-1)
        w = f's_waitcnt lgkmcnt({min(PD-1, 31-ks)})'
        if ks in (0, 12, 16, 20, 26): w += f' vmcnt({ {0:24,12:20,16:16,20:10,26:4}[ks] + (0 if last else 4)})'
        e(w)
        e(f'v_mfma_f32_32x32x16_bf16 v[16:31], a[{4*ks}:{4*ks+3}], v[{64+4*(ks%PD)}:{67+4*(ks%PD)}], {"0" if ks == 0 else "v[16:31]"}')
    e.stamp()
    e('s_mov_b32 s53, 0xffff0000\ns_mov_b32 s52, 0x3f803f80\ns_waitcnt vmcnt(0)')
    for i in range(8): e(f'v_lshlrev_b32 v{32+2*i}, 16, v{48+i}\nv_and_b32 v{33+2*i}, s53, v{48+i}')
    for i in range(8): e(f'v_pk_add_f32 v[{16+2*i}:{17+2*i}], v[{16+2*i}:{17+2*i}], v[{32+2*i}:{33+2*i}]')
    for i in range(8): e(f'v_cvt_pk_bf16_f32 v{32+i}, v{16+2*i}, v{17+2*i}')
    if not last:
        e('v_mov_b32 v12, 0\nv_mov_b32 v13, 0')
        for i in range(8): e(f'v_dot2c_f32_bf16 v12, s52, v{32+i}\nv_dot2c_f32_bf16 v13, v{32+i}, v{32+i}')
        e(f'''v_lshlrev_b32 v6, 5, v3
        s_lshl_b32 s48, s3, 3
        v_add_u32 v7, s48, v6
        s_lshl_b32 s47, s40, 10
        s_add_u32 s47, s47, {ST2}
        s_lshl_b32 s48, s41, 3
        s_add_u32 s50, s47, s48''')
        swap2(e, 12, 13, 'v_add_f32', 14, 15)
        e('''ds_write_b64 v7, v[14:15] offset:32768
        s_waitcnt lgkmcnt(0)
        s_barrier
        ds_read_b128 v[40:43], v6 offset:32768
        ds_read_b128 v[44:47], v6 offset:32784
        v_lshl_add_u32 v7, v4, 4, v6
        s_mov_b32 s48, 0
        s_waitcnt lgkmcnt(0)
        v_pk_add_f32 v[40:41], v[40:41], v[42:43]
        v_pk_add_f32 v[44:45], v[44:45], v[46:47]
        v_pk_add_f32 v[14:15], v[40:41], v[44:45]
        v_or_b32 v14, 1, v14
        v_or_b32 v15, 1, v15
        s_cmp_lg_u32 s3, 0
        s_cbranch_scc1 K3x_skip
        buffer_store_dwordx2 v[14:15], v6, s[20:23], s50 offen sc0 sc1 ;cond
        K3x_skip:''')
        e.stamp()
        for i in range(8): e(f'v_lshlrev_b32 v{16+2*i}, 16, v{32+i}\nv_and_b32 v{17+2*i}, s53, v{32+i}')
        for i in range(8): e(f'v_lshlrev_b32 v{64+2*i}, 16, v{88+i}\nv_and_b32 v{65+2*i}, s53, v{88+i}')
        for i in range(8): e(f'v_pk_mul_f32 v[{96+2*i}:{97+2*i}], v[{16+2*i}:{17+2*i}], v[{64+2*i}:{65+2*i}]')
        e('''K3x_poll:
        buffer_load_dwordx4 v[40:43], v7, s[20:23], s47 offen sc0 sc1
        s_add_u32 s48, s48, 1
        s_waitcnt vmcnt(0)
        v_min_u32 v44, v40, v41
        v_min3_u32 v44, v42, v43, v44
        v_cmp_eq_u32 vcc, 0, v44
        s_cbranch_vccz K3x_done
        s_cmp_lt_u32 s48, 0x20000
        s_cbranch_scc1 K3x_poll
        K3x_done:
        v_pk_add_f32 v[12:13], v[40:41], v[42:43]''')
        e.stamp()
        swap2(e, 12, 13, 'v_add_f32', 14, 15)
        e('''v_mul_f32 v12, 0xbb000000, v14
        v_mul_f32 v15, 0x3b000000, v15
        v_fma_f32 v15, -v12, v12, v15
        v_max_f32 v15, 0, v15
        v_add_f32 v15, 0x3727c5ac, v15
        v_rsq_f32 v14, v15''')
        for i in range(8): e(f'v_pk_fma_f32 v[{96+2*i}:{97+2*i}], v[{64+2*i}:{65+2*i}], v[12:13], v[{96+2*i}:{97+2*i}] op_sel_hi:[1,0,1]')
        for i in range(8): e(f'v_pk_fma_f32 v[{16+2*i}:{17+2*i}], v[{96+2*i}:{97+2*i}], v[14:15], v[{16+2*i}:{17+2*i}] op_sel_hi:[1,0,1]')
        for i in range(8): e(f'v_cvt_pk_bf16_f32 v{32+i}, v{16+2*i}, v{17+2*i}')
    e('v_permlane32_swap_b32 v32, v34\nv_permlane32_swap_b32 v33, v35\nv_permlane32_swap_b32 v36, v38\nv_permlane32_swap_b32 v37, v39')
    if last:
        e.srd(24, 16, 0x200000)
        e(f'''s_lshl_b32 s46, s40, 15
        s_lshl_b32 s47, s44, 6
        s_add_u32 s46, s46, s47
        v_lshlrev_b32 v8, 10, v3
        v_lshl_add_u32 v8, v4, 4, v8
        buffer_store_dwordx4 v[32:35], v8, s[24:27], s46 offen
        buffer_store_dwordx4 v[36:39], v8, s[24:27], s46 offen offset:32''')
    else:
        e(f'''buffer_store_dwordx4 v[32:35], v8, s[20:23], s46 offen
        s_add_u32 s46, s46, 65536
        buffer_store_dwordx4 v[36:39], v8, s[20:23], s46 offen''')
    e.stamp()
    if os.environ.get('STAMP'): e('s_waitcnt vmcnt(0)')
    e.dump(L)
    e(f'{L}_end:\ns_endpgm')
    return e.l, 256, 128
```

```python
import sys
from asmlib import *
from k01 import *
from k23 import *
NAME='interleave_layers__ssm_conv_h3__linear_kernel_hedgehog__prompt'
hdr = [l for l in open(f'cdna_kernels/{NAME}.s.ref').read().split('\n') if l.startswith(';') and '@launch' not in l]
import os, re
INV = os.environ.get('INV', '1') == '1'
def poll(e, lab, out):
    e(f"""s_mov_b32 s42, 0
    {lab}:
    buffer_load_dword v4, v2, s[20:23], s41 offen sc0 sc1
    s_add_u32 s42, s42, 1
    s_waitcnt vmcnt(0)
    v_cmp_ne_u32 vcc, 1, v4
    s_cbranch_vccz {out}
    s_cmp_lt_u32 s42, 0x20000
    s_cbranch_scc1 {lab}
    {out}:""")
def bar(b, local, pre=()):
    e = A()
    o = FLG + 16384*b; o2 = FLG + 49152 + 2048*b
    e(f"""s_waitcnt vmcnt(0) lgkmcnt(0)
    s_barrier
    s_cmp_lg_u32 s3, 0
    s_cbranch_scc1 BAR{b}_w
    v_mov_b32 v1, 1
    v_lshlrev_b32 v2, 6, v0
    v_lshlrev_b32 v3, 10, v0""")
    if local:
        e(f"""s_lshl_b32 s40, s40, 8
        s_lshl_b32 s41, s41, 6
        s_add_u32 s40, s40, s41
        s_add_u32 s40, s40, {o}
        s_and_b32 s41, s2, 3
        s_lshl_b32 s41, s41, 12
        s_bfe_u32 s42, s2, 0x20003
        s_lshl_b32 s42, s42, 10
        s_add_u32 s41, s41, s42
        s_add_u32 s41, s41, {o}""")
    else:
        e(f"""s_lshl_b32 s40, s2, 6
        s_add_u32 s40, s40, {o}
        s_mov_b32 s41, s40""")
    e(f"""s_mov_b64 exec, 1
    buffer_store_dword v1, v2, s[20:23], s40 offen sc0 sc1
    s_mov_b64 exec, 0xffff""")
    if not local:
        e(f"s_and_b32 s43, s2, 15\ns_cmp_lg_u32 s43, 0\ns_cbranch_scc1 BAR{b}_n")
        poll(e, f'BAR{b}_p1', f'BAR{b}_d1')
        e(f"""s_lshr_b32 s40, s2, 4
        s_lshl_b32 s40, s40, 6
        s_add_u32 s40, s40, {o2}
        s_mov_b64 exec, 15
        buffer_store_dword v1, v3, s[20:23], s40 offen sc0 sc1
        s_mov_b64 exec, 0xffff
        BAR{b}_n:
        s_bfe_u32 s41, s2, 0x20003
        s_lshl_b32 s41, s41, 10
        s_add_u32 s41, s41, {o2}""")
    poll(e, f'BAR{b}_p', f'BAR{b}_d')
    e(f"s_mov_b64 exec, -1\nBAR{b}_w:\ns_barrier")
    return e.l
def wt(l):
    t = l.split(';')[0].rstrip(); c = l[len(t):]
    if 's[56:59]' in t or 'sc1' in t: return l
    if t.strip().startswith('buffer_store'): return t + ' sc0 sc1' + c
    if t.strip().startswith('buffer_atomic'): return t + ' sc1' + c
    return l
k0 = K0(); k1 = K1()
ph = [K2full(0), K3(0), K2full(1), K3(1)]
body = []
for i, (l, nv, na) in enumerate(ph):
    assert 's_cmp_ge_u32 s2, 256' in l[0] and 's_endpgm' in l[-1], (l[0], l[-1])
    if i == 0: l = [l[0], 's_cbranch_scc1 K31_end'] + l[2:]
    else: l = l[2:]
    if i < 3: l = [wt(x) for x in l[:-1]] + bar(i, i == 1)
    body += l
ks = [('k0_kernel', k0, 352, 16384), ('k1_kernel', k1, 256, K1_LDS), ('kf_kernel', (body, 256, 128), 256, K2_LDS)]
n = int(sys.argv[2]) if len(sys.argv) > 2 else len(ks)
out = hdr + [f'; @launch kernel={k} grid=({g},1,1) block=(256,1,1) lds={l}' for k, _, g, l in ks[:n]]
out += ['.amdgcn_target "amdgcn-amd-amdhsa--gfx950"', '.text']
for k, (body, nv, na), g, l in ks:
    out += [f'.globl {k}', '.p2align 8', f'.type {k},@function', f'{k}:'] + fix_hazards(body)
out += ['.section .rodata,"a"']
for k, (body, nv, na), g, l in ks:
    out += ['.p2align 6', f'.amdhsa_kernel {k}', f'  .amdhsa_next_free_vgpr {nv+na}', '  .amdhsa_next_free_sgpr 100', f'  .amdhsa_accum_offset {nv}',
            '  .amdhsa_group_segment_fixed_size 0', '  .amdhsa_kernarg_size 104', '  .amdhsa_user_sgpr_count 2', '  .amdhsa_user_sgpr_kernarg_segment_ptr 1',
            '  .amdhsa_system_sgpr_workgroup_id_x 1', '.end_amdhsa_kernel']
open(sys.argv[1] if len(sys.argv) > 1 else f'cdna_kernels/{NAME}.s', 'w').write('\n'.join(out)+'\n')
```

```python
import os
from asmlib import *
from k01 import *
K2_LDS = 98304 + 4*4352
def swap2(e, a, b, op, oa, ob):
    e(f'v_permlane32_swap_b32 v{a}, v{b}\n{op} v{oa}, v{a}, v{b}\nv_mov_b32 v{ob}, v{oa}\nv_permlane32_swap_b32 v{oa}, v{ob}')
def K2(layer):
    L = f'K2{layer}'
    fly = False; res = layer == 1
    XIN = X3C if layer == 1 else X1C
    e = A()
    e(f'''s_cmp_ge_u32 s2, 256
    s_cbranch_scc1 {L}_end
    s_load_dwordx2 s[18:19], s[0:1], 96
    s_and_b32 s40, s2, 3
    s_lshl_b32 s40, s40, 2
    s_bfe_u32 s41, s2, 0x20003
    s_add_u32 s40, s40, s41
    s_bfe_u32 s41, s2, 0x10002
    s_lshl_b32 s41, s41, 3
    s_lshr_b32 s42, s2, 5
    s_add_u32 s41, s41, s42
    v_lshrrev_b32 v1, 6, v0
    v_and_b32 v2, 63, v0
    v_and_b32 v3, 31, v0
    v_readfirstlane_b32 s3, v1
    v_bfe_u32 v4, v0, 5, 1
    v_lshlrev_b32 v5, 4, v2
    v_lshlrev_b32 v6, 4, v3
    v_lshl_add_u32 v6, v4, 15, v6
    s_lshl_b32 s43, s40, 2
    s_add_u32 s43, s43, s3
    s_lshl_b32 s44, s43, 9
    s_mul_i32 s45, s41, 98304
    s_mul_i32 s46, s3, 3072
    s_add_u32 s45, s45, s46
    s_add_u32 s45, s45, {WQP}
    s_add_u32 s47, s44, {XIN}
    s_add_u32 s48, s44, {YC}
    s_add_u32 s49, s44, {X3C}
    s_waitcnt lgkmcnt(0)''')
    e.srd(20, 18, WS_SZ)
    e.stamp()
    if fly:
        e(f's_lshl_b32 s50, s43, 8\ns_add_u32 s50, s50, {ST2}\nv_lshlrev_b32 v7, 3, v3\nv_lshl_add_u32 v7, v4, 17, v7')
        for i in range(8):
            e(f'buffer_load_dwordx2 v[{96+2*i}:{97+2*i}], v7, s[20:23], s50 offen')
            if i < 7: e('s_add_u32 s50, s50, 16384')
    def areg(ks): return (128 + 8*(ks % 16)) if fly else 128+4*ks
    def loads(p):
        l = ['s_mov_b32 m0, s46\nbuffer_load_dwordx4 v5, s[20:23], s45 offen lds', 'buffer_load_dwordx4 v5, s[20:23], s45 offen offset:1024 lds',
             'buffer_load_dwordx4 v5, s[20:23], s45 offen offset:2048 lds\ns_add_u32 s45, s45, 12288\ns_add_u32 s46, s46, 12288']
        if res: l = []
        for ks in range(4*p, 4*p+4):
            r = areg(ks)
            l.append(f'buffer_load_dwordx4 v[{r}:{r+3}], v6, s[20:23], s47 offen\ns_add_u32 s47, s47, 65536')
            if fly: l.append(f'buffer_load_dwordx4 v[{r+4}:{r+7}], v6, s[20:23], s48 offen\ns_add_u32 s48, s48, 65536')
        return l
    per = 11 if fly else 7
    LA = 2 if res else 3
    for p in range(LA):
        for x in loads(p): e(x)
    if not res:
        e(f's_mul_i32 s50, s41, 384\ns_add_u32 s50, s50, {WSUM}\nv_lshlrev_b32 v7, 4, v4')
        for i in range(12): e(f'buffer_load_dwordx4 a[{128+4*i}:{131+4*i}], v7, s[20:23], s50 offen offset:{32*i}')
    e(f'''v_mov_b32 v10, 0
    v_mov_b32 v11, 0
    v_mov_b32 v12, 0
    v_mov_b32 v13, 0
    s_mov_b32 s53, 0xffff0000''')
    e(f'v_lshlrev_b32 v14, 2, v4\nv_sub_u32 v14, v3, v14\nv_mov_b32 v15, 0x3f80\nv_mov_b32 v8, 0x3f800000')
    for s in range(2):
        for q in range(4):
            x = 16*s + 8*(q//2) + 2*(q % 2)
            e(f'v_cmp_eq_u32 vcc, {x}, v14\nv_cndmask_b32 v{112+4*s+q}, 0, v15, vcc\nv_cmp_eq_u32 vcc, {x+1}, v14\nv_cndmask_b32 v{112+4*s+q}, v{112+4*s+q}, v8, vcc')
    if fly:
        e(f's_waitcnt vmcnt({LA*per})')
        for i in range(1, 8): e(f'v_pk_add_f32 v[96:97], v[96:97], v[{96+2*i}:{97+2*i}]')
        swap2(e, 96, 97, 'v_add_f32', 98, 99)
        e('''v_mul_f32 v98, 0x3b000000, v98
        v_mul_f32 v99, 0x3b000000, v99
        v_fma_f32 v99, -v98, v98, v99
        v_max_f32 v99, 0, v99
        v_add_f32 v99, 0x3727c5ac, v99
        v_rsq_f32 v120, v99
        s_nop 0
        v_mul_f32 v122, v98, v120
        v_sub_f32 v122, 0, v122''')
    ACC = [16, 32, 48]
    BF = [64, 76, 88]
    def rdB(ks):
        b = BF[ks % 3]
        for j in range(3): e(f'ds_read_b128 v[{b+4*j}:{b+4*j+3}], v{5 if ks < 16 else 9} offset:{(ks % 16)*3072+1024*j}')
    def conv(ks):
        r = areg(ks); l = []
        for j in range(4):
            t = 100 + 6*(j % 2)
            if fly:
                l += [f'v_lshlrev_b32 v{t}, 16, v{r+j}', f'v_and_b32 v{t+1}, s53, v{r+j}', f'v_lshlrev_b32 v{t+2}, 16, v{r+4+j}', f'v_and_b32 v{t+3}, s53, v{r+4+j}',
                      f'v_fma_f32 v{t+4}, v{t}, v120, v122', f'v_fma_f32 v{t+5}, v{t+1}, v120, v122', f'v_fmac_f32 v{t}, v{t+4}, v{t+2}', f'v_fmac_f32 v{t+1}, v{t+5}, v{t+3}',
                      f'v_cvt_pk_bf16_f32 v{r+j}, v{t}, v{t+1}']
            else:
                l += [f'v_lshlrev_b32 v{t}, 16, v{r+j}', f'v_and_b32 v{t+1}, s53, v{r+j}']
            l += [f'v_add_f32 v10, v10, v{t}', f'v_add_f32 v11, v11, v{t+1}', f'v_fmac_f32 v12, v{t}, v{t}', f'v_fmac_f32 v13, v{t+1}, v{t+1}']
        if fly: l.append(f's_cmp_lg_u32 s41, {ks//2}\ns_cbranch_scc1 {L}_sk{ks}\nbuffer_store_dwordx4 v[{r}:{r+3}], v6, s[20:23], s49 offen ;cond\n{L}_sk{ks}:\ns_add_u32 s49, s49, 65536')
        return l
    e('v_add_u32 v9, 49152, v5')
    e.stamp()
    if res:
        rdB(0); rdB(1)
        for ks in range(32):
            r = areg(ks)
            if ks+2 < 32: rdB(ks+2)
            e(f's_waitcnt vmcnt({min(7, 31-ks)}) lgkmcnt({3*min(2, 31-ks)})')
            if ks in (0, 4, 16, 28): e.stamp()
            b = BF[ks % 3]; cv = conv(ks); n3 = (len(cv)+2)//3
            for j in range(3):
                c = ACC[j]; cin = '0' if ks == 0 else f'v[{c}:{c+15}]'
                e(f'v_mfma_f32_32x32x16_bf16 v[{c}:{c+15}], v[{b+4*j}:{b+4*j+3}], v[{r}:{r+3}], {cin}')
                if j == 0 and ks+8 < 32: e(loads((ks+8)//4)[ks % 4])
                for x in cv[j*n3:(j+1)*n3]: e(x)
    for p in range(0 if res else 8):
        cnt = per*min(LA-1, 7-p) + (12 if p < 3 else 0)
        e(f's_waitcnt vmcnt({cnt})\ns_barrier')
        if p in (0, 1, 4, 7): e.stamp()
        rdB(4*p); rdB(4*p+1)
        ld = loads(p+LA) if p+LA < 8 else []
        if fly:
            for x in conv(4*p): e(x)
        for ks in range(4*p, 4*p+4):
            r = areg(ks)
            if ks+2 < 4*p+4: rdB(ks+2)
            rem = min(2, 4*p+3-ks)
            e(f's_waitcnt lgkmcnt({3*rem})')
            b = BF[ks % 3]
            cv = (conv(ks+1) if ks+1 < 4*p+4 else []) if fly else conv(ks)
            n3 = (len(cv)+2)//3
            for j in range(3):
                c = ACC[j]; cin = '0' if ks == 0 else f'v[{c}:{c+15}]'
                e(f'v_mfma_f32_32x32x16_bf16 v[{c}:{c+15}], v[{b+4*j}:{b+4*j+3}], v[{r}:{r+3}], {cin}')
                if ld and (fly or j != 1 or len(ld) == per): e(ld.pop(0))
                for x in cv[j*n3:(j+1)*n3]: e(x)
        assert not ld
    return e, L, fly
def K2full(layer):
    e, L, fly = K2(layer)
    e.stamp()
    if layer == 0:
        e(f's_bfe_u32 s54, s2, 0x20003\ns_lshl_b32 s54, s54, 2\ns_add_u32 s54, s54, s3\ns_lshl_b32 s54, s54, 15\ns_add_u32 s54, s54, {WOP}')
    for i in range(48):
        e(f'v_accvgpr_read_b32 v{128+i}, a{128+i}')
    if layer == 0:
        for j in range(8): e(f's_add_u32 s{4+j}, s54, {4096*j}')
    wo_at = len(e.l)
    e('v_add_f32 v10, v10, v11\nv_add_f32 v12, v12, v13')
    swap2(e, 10, 12, 'v_add_f32', 64, 66)
    e('''v_mul_f32 v64, 0xbb000000, v64
    v_mul_f32 v66, 0x3b000000, v66
    v_fma_f32 v66, -v64, v64, v66
    v_max_f32 v66, 0, v66
    v_add_f32 v66, 0x3727c5ac, v66
    v_rsq_f32 v66, v66
    v_mul_f32 v68, 0x3fb8aa3b, v66''')
    e.stamp()
    for t in (2, 1, 0):
        for i in range(8):
            c = 16+16*t+2*i; w = 128+16*t+2*i
            e(f'v_pk_fma_f32 v[{c}:{c+1}], v[{w}:{w+1}], v[64:65], v[{c}:{c+1}] op_sel_hi:[1,0,1]')
    for i in range(8): e(f'v_pk_mul_f32 v[{48+2*i}:{49+2*i}], v[{48+2*i}:{49+2*i}], v[66:67] op_sel_hi:[1,0]')
    for i in range(8): e(f'v_cvt_pk_bf16_f32 v{128+i}, v{48+2*i}, v{49+2*i}')
    e('v_mfma_f32_32x32x16_bf16 v[176:191], v[128:131], v[112:115], 0\nv_mfma_f32_32x32x16_bf16 v[176:191], v[132:135], v[116:119], v[176:191]')
    def softmax(c, out):
        e(f'''v_max3_f32 v70, v{c}, v{c+1}, v{c+2}
        v_max3_f32 v71, -v{c}, -v{c+1}, -v{c+2}
        v_max3_f32 v70, v70, v{c+3}, v{c+4}
        v_max3_f32 v71, v71, -v{c+3}, -v{c+4}
        v_max3_f32 v70, v70, v{c+5}, v{c+6}
        v_max3_f32 v71, v71, -v{c+5}, -v{c+6}
        v_max_f32 v70, v70, v{c+7}
        v_max_f32_e64 v71, v71, -v{c+7}''')
        swap2(e, 70, 71, 'v_max_f32', 72, 74)
        e('v_mul_f32_e64 v72, -v72, v68\nv_mul_f32_e64 v74, -v74, v68')
        for i in range(4):
            e(f'v_pk_fma_f32 v[{76+2*i}:{77+2*i}], v[{c+2*i}:{c+2*i+1}], v[68:69], v[72:73] op_sel_hi:[1,0,0]')
            e(f'v_pk_fma_f32 v[{84+2*i}:{85+2*i}], v[{c+2*i}:{c+2*i+1}], v[68:69], v[74:75] op_sel_hi:[1,0,0] neg_lo:[1,0,0] neg_hi:[1,0,0]')
        for i in range(16): e(f'v_exp_f32 v{76+i}, v{76+i}')
        e('''v_pk_add_f32 v[92:93], v[76:77], v[78:79]
        v_pk_add_f32 v[94:95], v[84:85], v[86:87]
        v_pk_add_f32 v[92:93], v[92:93], v[80:81]
        v_pk_add_f32 v[94:95], v[94:95], v[88:89]
        v_pk_add_f32 v[92:93], v[92:93], v[82:83]
        v_pk_add_f32 v[94:95], v[94:95], v[90:91]
        v_add_f32 v70, v92, v93
        v_add_f32 v71, v94, v95''')
        swap2(e, 70, 71, 'v_add_f32', 72, 74)
        e('v_rcp_f32 v72, v72\nv_rcp_f32 v74, v74')
        for i in range(8): e(f'v_pk_mul_f32 v[{76+2*i}:{77+2*i}], v[{76+2*i}:{77+2*i}], v[{72 if i < 4 else 74}:{73 if i < 4 else 75}] op_sel_hi:[1,0]')
        for i in range(8): e(f'v_cvt_pk_bf16_f32 v{out+i}, v{76+2*i}, v{77+2*i}')
    for h in range(2):
        softmax(32+8*h, 136+8*h)
        t = 200+16*h
        e(f'v_mfma_f32_32x32x16_bf16 v[{t}:{t+15}], v[{136+8*h}:{139+8*h}], v[112:115], 0\nv_mfma_f32_32x32x16_bf16 v[{t}:{t+15}], v[{140+8*h}:{143+8*h}], v[116:119], v[{t}:{t+15}]')
        if h == 0:
            e('v_cmp_gt_u32 vcc, 16, v3\nv_mov_b32 v96, 0x3f803f80')
            for i in range(8): e(f'v_cvt_pk_bf16_f32 v{192+i}, v{176+2*i}, v{177+2*i}')
            for i in range(8): e(f'v_cndmask_b32 v{152+i}, v96, v{192+i}, vcc\nv_cndmask_b32 v{160+i}, v{192+i}, v96, vcc')
    e(f's_lshl_b32 s50, s41, 18\ns_lshl_b32 s51, s43, 11\ns_add_u32 s50, s50, s51\ns_add_u32 s50, s50, {PQ1 if layer else PQ}\ns_add_u32 s51, s50, 131072')
    softmax(16, 100)
    e('buffer_store_dwordx4 v[100:103], v5, s[20:23], s50 offen\nbuffer_store_dwordx4 v[104:107], v5, s[20:23], s50 offen offset:1024')
    for h in range(2):
        t = 200+16*h
        for i in range(8): e(f'v_cvt_pk_bf16_f32 v{168+i}, v{t+2*i}, v{t+2*i+1}'.replace('v168', 'v168') if h == 0 else f'v_cvt_pk_bf16_f32 v{232+i}, v{t+2*i}, v{t+2*i+1}')
        A_ = 168 if h == 0 else 232; c = 176 if h == 0 else 32
        e(f'v_mfma_f32_32x32x16_bf16 v[{c}:{c+15}], v[{A_}:{A_+3}], v[{152+8*h}:{155+8*h}], 0\nv_mfma_f32_32x32x16_bf16 v[{c}:{c+15}], v[{A_+4}:{A_+7}], v[{156+8*h}:{159+8*h}], v[{c}:{c+15}]')
    e.stamp()
    if layer == 0:
        seg = e.l[wo_at:]; del e.l[wo_at:]
        st = len(seg) // 32
        for i in range(32):
            e(f'buffer_load_dwordx4 a[{4*i}:{4*i+3}], v5, s[20:23], s{4+i//4} offen offset:{1024*(i%4)}')
            e.l += seg[i*st:(i+1)*st] if i < 31 else seg[i*st:]
    e(f'''v_mul_u32_u24 v96, 272, v4
    s_mul_i32 s50, s3, 4352
    s_add_u32 s50, s50, 98304
    v_add_u32 v96, s50, v96
    v_min_u32 v97, 16, v3
    v_lshl_add_u32 v97, v97, 4, v96
    v_xor_b32 v98, 16, v3
    v_min_u32 v98, 16, v98
    v_lshl_add_u32 v98, v98, 4, v96''')
    for g in range(4): e(f'ds_write_b128 v97, v[{176+4*g}:{179+4*g}] offset:{g*544}')
    for g in range(4): e(f'ds_write_b128 v98, v[{32+4*g}:{35+4*g}] offset:{2176+g*544}')
    e(f'''v_lshlrev_b32 v96, 2, v0
    v_add_u32 v97, 98304, v96
    s_mul_i32 s50, s41, 4352
    s_add_u32 s50, s50, {STATE+layer*STATE_L}
    s_waitcnt lgkmcnt(0)
    s_barrier''')
    e.stamp()
    for i in range(5):
        for w in range(4): e(f'ds_read_b32 v{100+4*i+w}, v97 offset:{1024*i+4352*w}')
        if i in (2, 4): e('s_waitcnt lgkmcnt(0)')
    for i in range(5): e(f'v_add_f32 v{100+4*i}, v{100+4*i}, v{101+4*i}\nv_add_f32 v{102+4*i}, v{102+4*i}, v{103+4*i}\nv_add_f32 v{100+4*i}, v{100+4*i}, v{102+4*i}')
    for i in range(4): e(f'buffer_atomic_add_f32 v{100+4*i}, v96, s[20:23], s50 offen offset:{1024*i}')
    e(f'''s_cmp_lg_u32 s3, 0
    s_cbranch_scc1 {L}_na
    s_add_u32 s50, s50, 4096 ;cond
    buffer_atomic_add_f32 v116, v96, s[20:23], s50 offen ;cond
    {L}_na:''')
    softmax(24, 128)
    e('buffer_store_dwordx4 v[128:131], v5, s[20:23], s51 offen\nbuffer_store_dwordx4 v[132:135], v5, s[20:23], s51 offen offset:1024')
    e.stamp()
    if os.environ.get('STAMP'): e('s_waitcnt vmcnt(0)')
    e.dump(L)
    e(f'{L}_end:\ns_endpgm')
    return e.l, 256, 0

def K3(layer):
    L = f'K3{layer}'; last = layer == 1
    e = A()
    e(f'''s_cmp_ge_u32 s2, 256
    s_cbranch_scc1 {L}_end
    s_load_dwordx2 s[18:19], s[0:1], 96
    s_load_dwordx2 s[16:17], s[0:1], 80
    s_and_b32 s40, s2, 7
    s_lshl_b32 s40, s40, 3
    s_lshr_b32 s41, s2, 5
    s_add_u32 s40, s40, s41
    s_bfe_u32 s41, s2, 0x20003
    v_lshrrev_b32 v1, 6, v0
    v_and_b32 v2, 63, v0
    v_and_b32 v3, 31, v0
    v_readfirstlane_b32 s3, v1
    v_bfe_u32 v4, v0, 5, 1
    v_lshlrev_b32 v5, 4, v2
    v_min_u32 v6, 16, v3
    v_lshlrev_b32 v6, 4, v6
    v_mul_u32_u24 v7, 272, v4
    v_add_u32 v6, v6, v7
    s_mul_i32 s42, s3, {8*2176}
    s_add_u32 s42, s42, {STATE+layer*STATE_L}
    s_lshl_b32 s43, s3, 20
    s_lshl_b32 s44, s40, 11
    s_add_u32 s43, s43, s44
    s_add_u32 s43, s43, {PQ1 if layer else PQ}
    s_lshl_b32 s44, s41, 2
    s_add_u32 s44, s44, s3
    s_lshl_b32 s45, s44, 15
    s_add_u32 s45, s45, {WOP}
    s_waitcnt lgkmcnt(0)''')
    e.srd(20, 18, WS_SZ)
    e.stamp()
    for h in range(8):
        for s in range(2): e(f'buffer_load_dwordx4 v[{192+8*h+4*s}:{195+8*h+4*s}], v5, s[20:23], s43 offen offset:{1024*s}')
        if h < 7: e('s_add_u32 s43, s43, 131072')
    def wo(k0, k1):
        for ks in range(k0, k1):
            e(f'buffer_load_dwordx4 a[{4*ks}:{4*ks+3}], v5, s[20:23], s45 offen offset:{1024*(ks%4)}')
            if ks % 4 == 3: e('s_add_u32 s45, s45, 4096')
    e(f'''s_lshl_b32 s46, s44, 17
    s_lshl_b32 s47, s40, 9
    s_add_u32 s46, s46, s47
    s_add_u32 s47, s46, {X3C if last else X1C}
    s_add_u32 s49, s46, {YC}
    s_add_u32 s46, s46, {X3C}
    v_lshlrev_b32 v8, 4, v3
    v_lshl_add_u32 v9, v4, 3, v8
    v_lshl_add_u32 v8, v4, 15, v8
    s_lshl_b32 s48, s3, 13
    v_add_u32 v11, 98304, v5
    v_add_u32 v10, s48, v11''')
    for g in range(4): e(f'buffer_load_dwordx2 v[{48+2*g}:{49+2*g}], v9, s[20:23], s47 offen\ns_add_u32 s47, s47, 32768')
    if not last:
        for g in range(4): e(f'buffer_load_dwordx2 a[{176+2*g}:{177+2*g}], v9, s[20:23], s49 offen\ns_add_u32 s49, s49, 32768')
    e('@BAR2')
    e.stamp()
    def sl(h):
        for g in range(4): e(f'buffer_load_dwordx4 v[{64+16*h+4*g}:{67+16*h+4*g}], v6, s[20:23], s42 offen offset:{544*g}')
        if h < 7: e('s_add_u32 s42, s42, 2176')
    SLA = 4
    for h in range(SLA): sl(h)
    e.stamp()
    extra = {}
    issued = 32
    def fin(h):
        c = 16+16*(h % 2)
        e(f'v_add_f32 v12, 0x358637bd, v{c+8}\nv_rcp_f32 v12, v12')
        for i in range(4): e(f'v_pk_mul_f32 v[{c+2*i}:{c+2*i+1}], v[{c+2*i}:{c+2*i+1}], v[12:13] op_sel_hi:[1,0]')
        for i in range(4): e(f'v_cvt_pk_bf16_f32 v{56+4*(h%2)+i}, v{c+2*i}, v{c+2*i+1}')
        e(f'ds_write_b128 v10, v[{56+4*(h%2)}:{59+4*(h%2)}] offset:{1024*h}')
    for h in range(8):
        e(f's_waitcnt vmcnt({4*(min(h+SLA-1, 7)-h)})')
        if h in (0,4): e.stamp()
        b = 64+16*h
        for i in range(8): e(f'v_cvt_pk_bf16_f32 v{b+i}, v{b+2*i}, v{b+2*i+1}')
        c = 16+16*(h % 2)
        e(f'v_mfma_f32_32x32x16_bf16 v[{c}:{c+15}], v[{b}:{b+3}], v[{192+8*h}:{195+8*h}], 0\nv_mfma_f32_32x32x16_bf16 v[{c}:{c+15}], v[{b+4}:{b+7}], v[{196+8*h}:{199+8*h}], v[{c}:{c+15}]')
        if h in extra: wo(*extra[h]); issued += extra[h][1]-extra[h][0]
        if h+SLA < 8: sl(h+SLA)
        if h > 0: fin(h-1)
    fin(7)
    e.stamp()
    e('s_waitcnt lgkmcnt(0)\ns_barrier')
    e.stamp()
    PD = 6
    def rd(ks): e(f'ds_read_b128 v[{64+4*(ks%PD)}:{67+4*(ks%PD)}], v11 offset:{1024*ks}')
    for ks in range(PD-1): rd(ks)
    for ks in range(32):
        if ks+PD-1 < 32: rd(ks+PD-1)
        w = f's_waitcnt lgkmcnt({min(PD-1, 31-ks)})'
        e(w)
        e(f'v_mfma_f32_32x32x16_bf16 v[16:31], a[{4*ks}:{4*ks+3}], v[{64+4*(ks%PD)}:{67+4*(ks%PD)}], {"0" if ks == 0 else "v[16:31]"}')
    e.stamp()
    e('s_mov_b32 s53, 0xffff0000\ns_mov_b32 s52, 0x3f803f80\ns_waitcnt vmcnt(0)')
    for i in range(8): e(f'v_lshlrev_b32 v{32+2*i}, 16, v{48+i}\nv_and_b32 v{33+2*i}, s53, v{48+i}')
    for i in range(8): e(f'v_pk_add_f32 v[{16+2*i}:{17+2*i}], v[{16+2*i}:{17+2*i}], v[{32+2*i}:{33+2*i}]')
    for i in range(8): e(f'v_cvt_pk_bf16_f32 v{32+i}, v{16+2*i}, v{17+2*i}')
    if not last:
        e('v_mov_b32 v12, 0\nv_mov_b32 v13, 0')
        for i in range(8): e(f'v_dot2c_f32_bf16 v12, s52, v{32+i}\nv_dot2c_f32_bf16 v13, v{32+i}, v{32+i}')
        e(f'''v_lshlrev_b32 v6, 5, v3
        s_lshl_b32 s48, s3, 3
        v_add_u32 v11, 98304, v6
        v_add_u32 v7, s48, v11
        s_lshl_b32 s47, s40, 10
        s_add_u32 s47, s47, {ST2}
        s_lshl_b32 s48, s41, 3
        s_add_u32 s50, s47, s48''')
        swap2(e, 12, 13, 'v_add_f32', 14, 15)
        e('''ds_write_b64 v7, v[14:15] offset:32768
        s_waitcnt lgkmcnt(0)
        s_barrier
        ds_read_b128 v[40:43], v11 offset:32768
        ds_read_b128 v[44:47], v11 offset:32784
        v_lshl_add_u32 v7, v4, 4, v6
        s_mov_b32 s48, 0
        s_waitcnt lgkmcnt(0)
        v_pk_add_f32 v[40:41], v[40:41], v[42:43]
        v_pk_add_f32 v[44:45], v[44:45], v[46:47]
        v_pk_add_f32 v[14:15], v[40:41], v[44:45]
        v_or_b32 v14, 1, v14
        v_or_b32 v15, 1, v15
        s_cmp_lg_u32 s3, 0
        s_cbranch_scc1 K3x_skip
        buffer_store_dwordx2 v[14:15], v6, s[20:23], s50 offen sc0 sc1 ;cond
        K3x_skip:''')
        e.stamp()
        for i in range(8): e(f'v_lshlrev_b32 v{16+2*i}, 16, v{32+i}\nv_and_b32 v{17+2*i}, s53, v{32+i}')
        for i in range(8): e(f'v_accvgpr_read_b32 v{88+i}, a{176+i}')
        for i in range(8): e(f'v_lshlrev_b32 v{64+2*i}, 16, v{88+i}\nv_and_b32 v{65+2*i}, s53, v{88+i}')
        for i in range(8): e(f'v_pk_mul_f32 v[{96+2*i}:{97+2*i}], v[{16+2*i}:{17+2*i}], v[{64+2*i}:{65+2*i}]')
        e('''K3x_poll:
        buffer_load_dwordx4 v[40:43], v7, s[20:23], s47 offen sc0 sc1
        s_add_u32 s48, s48, 1
        s_waitcnt vmcnt(0)
        v_min_u32 v44, v40, v41
        v_min3_u32 v44, v42, v43, v44
        v_cmp_eq_u32 vcc, 0, v44
        s_cbranch_vccz K3x_done
        s_cmp_lt_u32 s48, 0x20000
        s_cbranch_scc1 K3x_poll
        K3x_done:
        v_pk_add_f32 v[12:13], v[40:41], v[42:43]''')
        e.stamp()
        swap2(e, 12, 13, 'v_add_f32', 14, 15)
        e('''v_mul_f32 v12, 0xbb000000, v14
        v_mul_f32 v15, 0x3b000000, v15
        v_fma_f32 v15, -v12, v12, v15
        v_max_f32 v15, 0, v15
        v_add_f32 v15, 0x3727c5ac, v15
        v_rsq_f32 v14, v15''')
        for i in range(8): e(f'v_pk_fma_f32 v[{96+2*i}:{97+2*i}], v[{64+2*i}:{65+2*i}], v[12:13], v[{96+2*i}:{97+2*i}] op_sel_hi:[1,0,1]')
        for i in range(8): e(f'v_pk_fma_f32 v[{16+2*i}:{17+2*i}], v[{96+2*i}:{97+2*i}], v[14:15], v[{16+2*i}:{17+2*i}] op_sel_hi:[1,0,1]')
        for i in range(8): e(f'v_cvt_pk_bf16_f32 v{32+i}, v{16+2*i}, v{17+2*i}')
    e('v_permlane32_swap_b32 v32, v34\nv_permlane32_swap_b32 v33, v35\nv_permlane32_swap_b32 v36, v38\nv_permlane32_swap_b32 v37, v39')
    if last:
        e.srd(24, 16, 0x200000)
        e(f'''s_lshl_b32 s46, s40, 15
        s_lshl_b32 s47, s44, 6
        s_add_u32 s46, s46, s47
        v_lshlrev_b32 v8, 10, v3
        v_lshl_add_u32 v8, v4, 4, v8
        buffer_store_dwordx4 v[32:35], v8, s[24:27], s46 offen
        buffer_store_dwordx4 v[36:39], v8, s[24:27], s46 offen offset:32''')
    else:
        e(f'''buffer_store_dwordx4 v[32:35], v8, s[20:23], s46 offen
        s_add_u32 s46, s46, 65536
        buffer_store_dwordx4 v[36:39], v8, s[20:23], s46 offen''')
    e.stamp()
    if os.environ.get('STAMP'): e('s_waitcnt vmcnt(0)')
    e.dump(L)
    e(f'{L}_end:\ns_endpgm')
    return e.l, 256, 128
```

```python
import sys
from asmlib import *
from k01 import *
from k23 import *
NAME='interleave_layers__ssm_conv_h3__linear_kernel_hedgehog__prompt'
hdr = [l for l in open(f'cdna_kernels/{NAME}.s.ref').read().split('\n') if l.startswith(';') and '@launch' not in l]
import os, re
INV = os.environ.get('INV', '1') == '1'
def poll(e, lab, va='v2', vd='v4', sa='s41', sc='s42'):
    e(f"""s_mov_b32 {sc}, 0
    {lab}:
    buffer_load_dword {vd}, {va}, s[20:23], {sa} offen sc0 sc1
    s_add_u32 {sc}, {sc}, 1
    s_waitcnt vmcnt(0)
    v_cmp_ne_u32 vcc, 1, {vd}
    s_cbranch_vccz {lab}d
    s_cmp_lt_u32 {sc}, 0x20000
    s_cbranch_scc1 {lab}
    {lab}d:""")
def bar(b, local):
    e = A()
    o = FLG + 16384*b; o2 = FLG + 49152 + 2048*b
    e(f"""s_waitcnt vmcnt(0) lgkmcnt(0)
    s_barrier
    s_cmp_lg_u32 s3, 0
    s_cbranch_scc1 BAR{b}_w
    v_mov_b32 v1, 1
    v_lshlrev_b32 v2, 6, v0
    v_lshlrev_b32 v3, 10, v0
    s_lshl_b32 s40, s40, {8 if local else 10}
    s_lshl_b32 s41, s41, 6
    s_add_u32 s40, s40, s41
    s_add_u32 s40, s40, {o}""")
    if local:
        e(f"s_and_b32 s43, s2, 3\ns_lshl_b32 s43, s43, 2\ns_bfe_u32 s42, s2, 0x20003")
    else:
        e(f"s_and_b32 s43, s2, 7\ns_lshl_b32 s43, s43, 1\ns_lshr_b32 s42, s2, 7")
    e(f"""s_add_u32 s43, s43, s42
    s_lshl_b32 s41, s43, 10
    s_add_u32 s41, s41, {o}
    s_mov_b64 exec, 1
    buffer_store_dword v1, v2, s[20:23], s40 offen sc0 sc1
    s_mov_b64 exec, 0xffff""")
    poll(e, f'BAR{b}_p')
    if not local:
        e(f"""s_bfe_u32 s42, s2, 0x40003
        s_cmp_lg_u32 s42, 0
        s_cbranch_scc1 BAR{b}_n
        s_lshl_b32 s40, s43, 6
        s_add_u32 s40, s40, {o2}
        s_mov_b64 exec, 15
        buffer_store_dword v1, v3, s[20:23], s40 offen sc0 sc1
        BAR{b}_n:""")
    e(f"s_mov_b64 exec, -1\nBAR{b}_w:\ns_barrier")
    return e.l
def bar2(b):
    e = A()
    o2 = FLG + 49152 + 2048*b
    e(f"""s_cmp_lg_u32 s3, 0
    s_cbranch_scc1 BAR{b}_x
    v_lshlrev_b32 v14, 6, v0
    s_bfe_u32 s55, s2, 0x20003
    s_lshl_b32 s55, s55, 10
    s_add_u32 s55, s55, {o2}
    s_mov_b64 exec, 0xffff""")
    poll(e, f'BAR{b}_q', 'v14', 'v15', 's55', 's51')
    e(f"s_mov_b64 exec, -1\nBAR{b}_x:\ns_barrier")
    return e.l
def wt(l):
    t = l.split(';')[0].rstrip(); c = l[len(t):]
    if 's[56:59]' in t or 'sc1' in t: return l
    if t.strip().startswith('buffer_store'): return t + ' sc0 sc1' + c
    if t.strip().startswith('buffer_atomic'): return t + ' sc1' + c
    return l
k0 = K0(); k1 = K1()
ph = [K2full(0), K3(0), K2full(1), K3(1)]
body = []
for i, (l, nv, na) in enumerate(ph):
    assert 's_cmp_ge_u32 s2, 256' in l[0] and 's_endpgm' in l[-1], (l[0], l[-1])
    if i == 0: l = [l[0], 's_cbranch_scc1 K31_end', 's_load_dwordx2 s[16:17], s[0:1], 80'] + l[2:]
    else: l = [x for x in l[2:] if not re.match(r'\s*s_load_dwordx2 s\[1[68]:', x)]
    if i < 3: l = [wt(x) for x in l[:-1]] + bar(i, i == 1)
    for x in l: body += bar2(i-1) if x.strip() == '@BAR2' else [x]
ks = [('k0_kernel', k0, 352, 16384), ('k1_kernel', k1, 256, K1_LDS), ('kf_kernel', (body, 256, 184), 256, 132096)]
n = int(sys.argv[2]) if len(sys.argv) > 2 else len(ks)
out = hdr + [f'; @launch kernel={k} grid=({g},1,1) block=(256,1,1) lds={l}' for k, _, g, l in ks[:n]]
out += ['.amdgcn_target "amdgcn-amd-amdhsa--gfx950"', '.text']
for k, (body, nv, na), g, l in ks:
    out += [f'.globl {k}', '.p2align 8', f'.type {k},@function', f'{k}:'] + fix_hazards(body)
out += ['.section .rodata,"a"']
for k, (body, nv, na), g, l in ks:
    out += ['.p2align 6', f'.amdhsa_kernel {k}', f'  .amdhsa_next_free_vgpr {nv+na}', '  .amdhsa_next_free_sgpr 100', f'  .amdhsa_accum_offset {nv}',
            '  .amdhsa_group_segment_fixed_size 0', '  .amdhsa_kernarg_size 104', '  .amdhsa_user_sgpr_count 2', '  .amdhsa_user_sgpr_kernarg_segment_ptr 1',
            '  .amdhsa_system_sgpr_workgroup_id_x 1', '.end_amdhsa_kernel']
open(sys.argv[1] if len(sys.argv) > 1 else f'cdna_kernels/{NAME}.s', 'w').write('\n'.join(out)+'\n')
```

```python
import os
from asmlib import *
URT=0x0; X0T=0x200000; ST0=0x400000; WQP=0x500000; WSUM=0x680000; WOP=0x700000
YC=0x800000; X1C=0xA00000; X2C=0xC00000; X3C=0xE00000; PQ=0x1000000; STATE=0x1400000; ST2=0x1400000+2*32*2176
WS_SZ=0x1900000; PQ1=0x1500000; FLG=ST2+65536; STATE_L=32*2176
def ws_srd(A_, d, tmp):
    A_(f's_load_dwordx2 s[{tmp}:{tmp+1}], s[0:1], 96')
def K0():
    e = A()
    e('''s_cmp_ge_u32 s2, 320
    s_cbranch_scc1 K0_end
    s_load_dwordx4 s[4:7], s[0:1], 0
    s_load_dwordx4 s[8:11], s[0:1], 16
    s_load_dwordx4 s[12:15], s[0:1], 56
    s_load_dwordx2 s[16:17], s[0:1], 72
    s_load_dwordx2 s[18:19], s[0:1], 96
    v_lshrrev_b32 v1, 6, v0
    v_and_b32 v2, 63, v0
    s_nop 0
    v_readfirstlane_b32 s3, v1
    s_waitcnt lgkmcnt(0)''')
    e.srd(20, 18, WS_SZ)
    e('''s_cmp_lt_u32 s2, 64
    s_cbranch_scc1 K0_pack
''')
    e.srd(24, 4, 0x200000)
    e.srd(28, 6, 0x200000)
    e.srd(32, 8, 0x200000)
    e.srd(36, 10, 4096)
    e(f'''s_sub_u32 s40, s2, 64
    s_lshr_b32 s41, s40, 3
    s_and_b32 s42, s40, 7
    v_lshrrev_b32 v3, 3, v0
    v_and_b32 v4, 7, v0
    s_lshl_b32 s43, s41, 16
    s_lshl_b32 s44, s42, 7
    s_add_u32 s43, s43, s44
    v_lshlrev_b32 v5, 11, v3
    v_lshl_add_u32 v5, v4, 4, v5
    v_add_u32 v5, s43, v5
    v_add_u32 v6, 0xfffff400, v5
    v_add_u32 v7, 0xfffff800, v5
    v_add_u32 v8, 0xfffffc00, v5
    s_lshl_b32 s45, s42, 9
    v_lshl_add_u32 v9, v4, 6, s45
    buffer_load_dwordx4 v[16:19], v6, s[28:31], 0 offen
    buffer_load_dwordx4 v[20:23], v7, s[28:31], 0 offen
    buffer_load_dwordx4 v[24:27], v8, s[28:31], 0 offen
    buffer_load_dwordx4 v[28:31], v5, s[28:31], 0 offen
    buffer_load_dwordx4 v[32:35], v5, s[28:31], 0 offen offset:1024
    buffer_load_dwordx4 v[36:39], v5, s[32:35], 0 offen
    buffer_load_dwordx4 v[40:43], v5, s[32:35], 0 offen offset:1024
    buffer_load_dwordx4 v[52:55], v9, s[36:39], 0 offen
    buffer_load_dwordx4 v[56:59], v9, s[36:39], 0 offen offset:16
    buffer_load_dwordx4 v[60:63], v9, s[36:39], 0 offen offset:32
    buffer_load_dwordx4 v[64:67], v9, s[36:39], 0 offen offset:48
    s_add_u32 s48, s18, {STATE}
    s_addc_u32 s49, s19, 0''')
    e.srd(52, 48, 2*STATE_L+65536+57344)
    e(f'''s_lshl_b32 s46, s40, 10
    v_lshl_add_u32 v10, v0, 2, s46
    v_mov_b32 v11, 0
    buffer_store_dword v11, v10, s[52:55], 0 offen
    v_lshrrev_b32 v12, 2, v3
    v_xor_b32 v13, v12, v4
    v_lshlrev_b32 v13, 4, v13
    v_lshl_add_u32 v13, v4, 10, v13
    v_and_b32 v14, 3, v3
    v_lshl_add_u32 v15, v14, 2, v13
    v_xor_b32 v14, 0x7c, v15
    s_mov_b32 s50, 0x05040100
    s_mov_b32 s51, 0x07060302
    s_mov_b32 s47, 0xffff0000
    s_waitcnt vmcnt(1)''')
    for i in range(8):
        lo = (i % 2 == 0); d = i//2
        def up(dst, src):
            return f'v_lshlrev_b32 v{dst}, 16, v{src}' if lo else f'v_and_b32 v{dst}, s47, v{src}'
        for r in range(5): e(up(70+r, 16+4*r+d))
        e(up(75, 36+d)); e(up(76, 40+d))
        w = 52+2*i
        e(f'''v_lshlrev_b32 v77, 16, v{w}
        v_and_b32 v78, s47, v{w}
        v_lshlrev_b32 v79, 16, v{w+1}
        v_and_b32 v80, s47, v{w+1}
        v_mul_f32 v81, v70, v80
        v_mul_f32 v82, v71, v80
        v_fmac_f32 v81, v71, v79
        v_fmac_f32 v82, v72, v79
        v_fmac_f32 v81, v72, v78
        v_fmac_f32 v82, v73, v78
        v_fmac_f32 v81, v73, v77
        v_fmac_f32 v82, v74, v77
        v_mul_f32 v81, v81, v75
        v_mul_f32 v82, v82, v76
        v_cvt_pk_bf16_f32 v{84+i}, v82, v81
        ds_write_b32 v14, v{84+i} offset:{i*128}''')
    e(f'''v_lshrrev_b32 v12, 6, v0
    v_xor_b32 v12, v12, v4
    v_lshlrev_b32 v12, 4, v12
    v_lshl_add_u32 v12, v3, 7, v12
    v_xor_b32 v13, 64, v12
    s_lshl_b32 s43, s42, 18
    s_lshl_b32 s44, s41, 7
    s_add_u32 s45, s43, s44
    s_add_u32 s45, s45, {X0T}
    s_sub_u32 s43, s43, s44
    s_add_u32 s43, s43, {URT+3968}
    v_lshlrev_b32 v5, 12, v3
    v_lshl_add_u32 v5, v4, 4, v5
    v_add_u32 v6, 0x20000, v5
    s_waitcnt lgkmcnt(0)
    s_barrier
    ds_read_b128 v[16:19], v12
    ds_read_b128 v[20:23], v13 offset:4096
    s_waitcnt lgkmcnt(1)
    buffer_store_dwordx4 v[16:19], v5, s[20:23], s43 offen
    s_waitcnt lgkmcnt(0)
    buffer_store_dwordx4 v[20:23], v6, s[20:23], s43 offen
    s_endpgm''')
    e('K0_pack:')
    e.srd(24, 12, 512*3072)
    e.srd(28, 14, 16384)
    e(f'''s_mov_b32 s40, s2
    v_and_b32 v3, 31, v0
    v_bfe_u32 v4, v0, 5, 1
    v_and_b32 v5, 0x13, v3
    v_and_b32 v6, 4, v3
    v_lshl_or_b32 v5, v6, 1, v5
    v_and_b32 v6, 8, v3
    v_lshrrev_b32 v6, 1, v6
    v_or_b32 v5, v5, v6
    s_cmp_lt_u32 s40, 48
    s_cbranch_scc1 K0_pq''')
    e.srd(24, 16, 512*1024)
    e(f'''s_sub_u32 s41, s40, 48
    s_lshl_b32 s42, s41, 6
    s_movk_i32 s43, 1024
    s_lshl_b32 s44, s41, 15
    s_add_u32 s44, s44, {WOP}
    s_movk_i32 s45, 1024
    s_mov_b32 s46, 2
    v_mov_b32 v5, v3
    s_mov_b32 s47, {WSUM+8192}
    s_branch K0_pgo
    K0_pq:
    s_lshr_b32 s46, s40, 4
    s_and_b32 s41, s40, 15
    s_lshl_b32 s42, s41, 6
    s_lshl_b32 s43, s46, 10
    s_add_u32 s42, s42, s43
    s_mul_i32 s44, s41, 98304
    s_add_u32 s44, s44, s43
    s_add_u32 s44, s44, {WQP}
    s_movk_i32 s43, 3072
    s_movk_i32 s45, 3072
    s_mul_i32 s47, s41, 384
    s_lshl_b32 s48, s46, 7
    s_add_u32 s47, s47, s48
    s_add_u32 s47, s47, {WSUM}
    K0_pgo:
    v_mul_lo_u32 v7, v5, s43
    v_lshl_add_u32 v7, v4, 4, v7
    s_lshl_b32 s43, s43, 5
    s_lshl_b32 s48, s3, 2
    s_mul_i32 s49, s48, s43
    s_add_u32 s42, s42, s49
    s_lshl_b32 s48, s48, 1
    s_mul_i32 s49, s48, s45
    s_add_u32 s44, s44, s49''')
    for it in range(4):
        e(f'buffer_load_dwordx4 v[{64+8*it}:{67+8*it}], v7, s[24:27], s42 offen\nbuffer_load_dwordx4 v[{68+8*it}:{71+8*it}], v7, s[24:27], s42 offen offset:32')
        if it < 3: e('s_add_u32 s42, s42, s43')
    e('''v_and_b32 v8, 15, v0
    v_bfe_u32 v9, v0, 4, 1
    s_cmp_lt_u32 s46, 2
    s_cbranch_scc1 K0_phi
    v_lshlrev_b32 v10, 3, v4
    v_sub_u32 v10, v8, v10
    v_mov_b32 v12, 0x3f80
    v_mov_b32 v13, 0x3f800000''')
    for q in range(4):
        e(f'''v_cmp_eq_u32 vcc, {2*q}, v10
        v_cndmask_b32 v{16+q}, 0, v12, vcc
        v_cmp_eq_u32 vcc, {2*q+1}, v10
        v_cndmask_b32 v{16+q}, v{16+q}, v13, vcc''')
    e('''s_branch K0_pb
    K0_phi:
    s_lshl_b32 s48, s41, 10
    v_lshlrev_b32 v10, 9, v9
    v_lshl_add_u32 v10, v4, 8, v10
    v_lshl_add_u32 v10, v8, 1, v10''')
    for j in range(8):
        e(f'buffer_load_ushort v{32+j}, v10, s[28:31], s48 offen offset:{32*j}')
    e('s_waitcnt vmcnt(0)')
    for q in range(4): e(f'v_lshl_or_b32 v{16+q}, v{33+2*q}, 16, v{32+2*q}')
    e('''
    K0_pb:
    v_cmp_eq_u32 vcc, 0, v9
    v_lshlrev_b32 v11, 4, v2
    v_mov_b32 v14, 0
    s_mov_b32 s49, 0x3f803f80''')
    for q in range(4): e(f'v_cndmask_b32 v{20+q}, 0, v{16+q}, vcc\nv_cndmask_b32 v{24+q}, v{16+q}, 0, vcc')
    e('s_waitcnt vmcnt(0)')
    for it in range(4):
        c = 32 + 16*(it % 2)
        e(f'v_mfma_f32_32x32x16_bf16 v[{c}:{c+15}], v[{64+8*it}:{67+8*it}], v[20:23], 0\nv_mfma_f32_32x32x16_bf16 v[{c}:{c+15}], v[{68+8*it}:{71+8*it}], v[24:27], v[{c}:{c+15}]')
        if it > 0: pk_out(e, it-1)
    pk_out(e, 3)
    e('''v_mov_b32 v15, v14
    v_lshlrev_b32 v3, 2, v3
    v_permlane32_swap_b32 v14, v15
    v_add_f32 v14, v14, v15
    s_lshl_b32 s48, s3, 7
    v_add_u32 v15, s48, v3
    ds_write_b32 v15, v14
    s_waitcnt lgkmcnt(0)
    s_barrier
    ds_read2_b32 v[16:17], v3 offset0:0 offset1:32
    ds_read2_b32 v[18:19], v3 offset0:64 offset1:96
    s_waitcnt lgkmcnt(0)
    v_add_f32 v16, v16, v17
    v_add_f32 v18, v18, v19
    v_add_f32 v14, v16, v18
    buffer_store_dword v14, v3, s[20:23], s47 offen
    K0_end:
    s_endpgm''')
    return e.l, 104, 0
def pk_out(e, it):
    c = 32 + 16*(it % 2); d = 64+8*it
    for j in range(8): e(f'v_cvt_pk_bf16_f32 v{d+j}, v{c+2*j}, v{c+2*j+1}')
    for j in range(8): e(f'v_dot2c_f32_bf16 v14, s49, v{d+j}')
    e(f'buffer_store_dwordx4 v[{d}:{d+3}], v11, s[20:23], s44 offen\ns_add_u32 s44, s44, s45\nbuffer_store_dwordx4 v[{d+4}:{d+7}], v11, s[20:23], s44 offen\ns_add_u32 s44, s44, s45')

HS=4160; URB=0; URP=7680; YA=2*URP; HB=YA+24576; K1_LDS=HB+16*HS
def K1():
    e = A()
    e(f'''s_cmp_ge_u32 s2, 256
    s_cbranch_scc1 K1_end
    s_load_dwordx4 s[4:7], s[0:1], 32
    s_load_dwordx2 s[18:19], s[0:1], 96
    s_and_b32 s40, s2, 7
    s_lshl_b32 s40, s40, 5
    s_lshr_b32 s41, s2, 3
    s_add_u32 s40, s40, s41
    v_lshrrev_b32 v1, 6, v0
    v_and_b32 v2, 127, v0
    v_lshrrev_b32 v3, 7, v0
    v_readfirstlane_b32 s3, v1
    s_lshl_b32 s41, s40, 13
    v_lshlrev_b32 v4, 4, v0
    v_lshl_add_u32 v4, v3, 11, v4
    s_waitcnt lgkmcnt(0)''')
    e.srd(20, 18, WS_SZ); e.srd(24, 4, 0x200000)
    e.stamp()
    e(f'''s_lshl_b32 s42, s40, 2
    s_load_dword s43, s[6:7], s42
    v_add_u32 v5, s41, v4
    v_add_u32 v6, -16, v5
    v_cmp_eq_u32 vcc, 0, v2
    v_cndmask_b32 v7, v6, -1, vcc
    buffer_load_dwordx4 v[16:19], v7, s[24:27], 0 offen
    buffer_load_dwordx4 v[20:23], v5, s[24:27], 0 offen
    buffer_load_dwordx4 v[24:27], v5, s[24:27], 0 offen offset:2032
    buffer_load_dwordx4 v[28:31], v5, s[24:27], 0 offen offset:2048
    buffer_load_dwordx4 v[32:35], v5, s[20:23], 0 offen
    buffer_load_dwordx4 v[36:39], v5, s[20:23], 0 offen offset:2048
    s_add_u32 s44, s41, {X0T}
    s_add_u32 s45, s44, 4096
    s_mov_b32 s46, {ST0}
    s_mov_b32 s47, {ST0+8192}
    v_lshlrev_b32 v8, 1, v0
    v_lshlrev_b32 v9, 3, v0''')
    e(f'''v_mov_b64 v[40:41], 0
    v_mov_b64 v[42:43], 0
    v_bfe_u32 v10, v0, 2, 4
    v_and_b32 v11, 3, v0
    v_min_u32 v11, 2, v11
    v_mul_u32_u24 v10, {HS}, v10
    v_lshl_add_u32 v10, v11, 4, v10
    v_add_u32 v10, {HB}, v10
    ds_write_b128 v10, v[40:43]
    v_mul_u32_u24 v10, {URP}, v3
    v_lshl_add_u32 v11, v2, 4, v10
    ds_write_b128 v11, v[40:43] offset:{URB+5120}
    v_and_b32 v11, 31, v0
    v_lshl_add_u32 v11, v11, 4, v10
    ds_write_b128 v11, v[40:43] offset:{URB+5120+2048}
    v_lshrrev_b32 v11, 2, v2
    v_mul_u32_u24 v11, 80, v11
    v_add_u32 v10, v10, v11
    v_and_b32 v11, 3, v0
    v_lshl_add_u32 v10, v11, 4, v10
    v_mul_u32_u24 v12, {8*HS}, v3
    v_lshl_add_u32 v12, v2, 4, v12
    v_add_u32 v12, {HB}, v12''')
    for i in range(2):
        D = 16+8*i
        e.stamp()
        e(f's_waitcnt vmcnt({4-2*i})')
        e.stamp()
        T = 44+18*i
        for k in range(6): e(f'v_alignbit_b32 v{T+k}, v{D+k+1}, v{D+k}, 16\nv_alignbit_b32 v{T+6+k}, v{D+k+2}, v{D+k+1}, 16\nv_mov_b32 v{T+12+k}, v{D+1+k}')
        src = {0:T, 4:T+2, 2:T+6, 6:T+8, 1:T+12, 5:T+14, 3:D+2, 7:D+4}
        for r in (3,7,0,4,2,6,1,5): e(f'ds_write_b128 v12, v[{src[r]}:{src[r]+3}] offset:{r*HS+48+2048*i}')
    e(f'''s_waitcnt vmcnt(0)
    ds_write_b128 v10, v[32:35] offset:{URB}
    ds_write_b128 v10, v[36:39] offset:{URB+2560}
    s_lshr_b32 s48, s3, 1
    s_and_b32 s49, s3, 1
    v_and_b32 v10, 7, v0
    v_mul_u32_u24 v10, {HS}, v10
    v_bfe_u32 v11, v0, 3, 3
    v_lshl_add_u32 v10, v11, 4, v10
    v_bfe_u32 v12, v0, 5, 1
    v_mul_u32_u24 v11, 48, v12
    v_sub_u32 v10, v10, v11
    s_mul_i32 s50, s48, {8*HS}
    s_add_u32 s50, s50, {HB}
    v_add_u32 v10, s50, v10
    v_and_b32 v11, 31, v0
    v_sub_u32 v11, 31, v11
    v_mul_u32_u24 v11, 80, v11
    v_lshl_add_u32 v11, v12, 4, v11
    s_mul_i32 s50, s48, {URP}
    s_add_u32 s50, s50, {URB}
    s_xor_b32 s51, s49, 1
    s_mul_i32 s52, s51, 2560
    s_add_u32 s52, s52, s50
    v_add_u32 v13, s52, v11
    s_mul_i32 s52, s51, 1280
    s_add_u32 s52, s52, s50
    v_add_u32 v14, s52, v11
    s_lshl_b32 s52, s51, 10
    v_add_u32 v15, s52, v10
    s_waitcnt lgkmcnt(0)
    s_barrier''')
    e.stamp()
    PD = 5
    def rd(st):
        b = 16 + 8*(st % PD)
        hv, uv = ('v10', 'v13') if st < 64 else ('v15', 'v14')
        e(f'ds_read_b128 v[{b}:{b+3}], {uv} offset:{80*(st//2)+32*(st%2)}\nds_read_b128 v[{b+4}:{b+7}], {hv} offset:{32*st}')
    for st in range(PD-1): rd(st)
    for st in range(96):
        if st+PD-1 < 96: rd(st+PD-1)
        rem = min(PD-1, 95-st)
        e(f's_waitcnt lgkmcnt({2*rem})')
        b = 16 + 8*(st % PD); c = 64 if st < 64 else 80
        cin = '0' if st in (0, 64) else f'v[{c}:{c+15}]'
        e(f'v_mfma_f32_32x32x16_bf16 v[{c}:{c+15}], v[{b}:{b+3}], v[{b+4}:{b+7}], {cin}')
    e.stamp()
    e(f'''v_and_b32 v10, 31, v0
    v_lshlrev_b32 v10, 2, v10
    v_lshl_add_u32 v10, v12, 9, v10
    s_mul_i32 s50, s48, 12288
    s_add_u32 s50, s50, {YA}
    v_add_u32 v10, s50, v10
    s_lshl_b32 s52, s51, 12
    v_add_u32 v11, s52, v10
    s_cmp_eq_u32 s49, 0
    s_nop 7
    s_cbranch_scc1 K1_a''')
    for i in range(8): e(f'v_pk_add_f32 v[{80+2*i}:{81+2*i}], v[{80+2*i}:{81+2*i}], v[{64+2*i}:{65+2*i}]')
    e('s_branch K1_b\nK1_a:')
    for r in range(16): e(f'ds_write_b32 v10, v{64+r} offset:{(8*(r//4)+r%4)*128}')
    e('K1_b:')
    for r in range(16): e(f'ds_write_b32 v11, v{80+r} offset:{4096+(8*(r//4)+r%4)*128}')
    e(f'''v_lshlrev_b32 v10, 2, v0
    v_sub_u32 v11, 255, v0
    v_lshrrev_b32 v12, 5, v11
    v_mul_u32_u24 v12, 80, v12
    v_and_b32 v11, 31, v11
    v_lshl_add_u32 v11, v11, 1, v12
    s_lshl_b32 s44, s43, 16
    s_and_b32 s45, s43, 0xffff0000
    s_mov_b32 s47, 0xffff0000
    s_lshr_b32 s50, s40, 2
    s_lshl_b32 s50, s50, 15
    s_and_b32 s51, s40, 3
    s_lshl_b32 s51, s51, 2
    s_add_u32 s50, s50, s51
    s_add_u32 s51, s50, {X1C}
    s_add_u32 s50, s50, {YC}
    v_lshlrev_b32 v13, 4, v0
    s_waitcnt lgkmcnt(0)
    s_barrier''')
    e.stamp()
    for i in range(8):
        e(f'''ds_read_b32 v{16+2*i}, v10 offset:{YA+1024*i}
        ds_read_b32 v{17+2*i}, v10 offset:{YA+12288+1024*i}
        ds_read_u16 v{48+2*i}, v11 offset:{URB+640*(7-i)}
        ds_read_u16 v{49+2*i}, v11 offset:{URB+URP+640*(7-i)}''')
        if i >= 4: e(f'ds_read_b32 v{24+2*i}, v10 offset:{YA+4096+1024*i}\nds_read_b32 v{25+2*i}, v10 offset:{YA+12288+4096+1024*i}')
        if i % 2 == 1: e('s_waitcnt lgkmcnt(0)')
    e('s_waitcnt vmcnt(0)')
    e.stamp()
    for i in range(8):
        y = 16+2*i; u = 48+2*i; st = 136+2*i
        if i >= 4: e(f'v_pk_add_f32 v[{y}:{y+1}], v[{y}:{y+1}], v[{y+8}:{y+9}]'.replace(f'v[{y+8}:{y+9}]', f'v[{24+2*i}:{25+2*i}]'))
        e(f'''v_lshlrev_b32 v{u}, 16, v{u}
        v_lshlrev_b32 v{u+1}, 16, v{u+1}
        v_fmac_f32 v{y}, s44, v{u}
        v_fmac_f32 v{y+1}, s45, v{u+1}
        v_cvt_pk_bf16_f32 v{64+i}, v{y}, v{y+1}
        buffer_store_dword v{64+i}, v13, s[20:23], s50 offen
        s_add_u32 s50, s50, 4096
        s_add_u32 s51, s51, 4096''')
    e.stamp()
    if os.environ.get('STAMP'): e('s_waitcnt vmcnt(0)')
    e.dump('K1')
    e('K1_end:\ns_endpgm')
    return e.l, 160, 0
```

```python
import os
from asmlib import *
from k01 import *
MID = []; NE = int(os.environ.get('NE', 3))
K2_LDS = 98304 + 4*4352
def swap2(e, a, b, op, oa, ob, w=32):
    e(f'v_permlane{w}_swap_b32 v{a}, v{b}\n{op} v{oa}, v{a}, v{b}\nv_mov_b32 v{ob}, v{oa}\nv_permlane{w}_swap_b32 v{oa}, v{ob}')
def K2(layer, pre=False):
    L = f'K2{layer}'
    fly = False; res = not pre
    XIN = X3C if layer == 1 else X1C
    e = A()
    e(f'''s_cmp_ge_u32 s2, 256
    s_cbranch_scc1 {L}_end
    s_load_dwordx2 s[18:19], s[0:1], 96
    s_and_b32 s40, s2, 3
    s_lshl_b32 s40, s40, 2
    s_bfe_u32 s41, s2, 0x20003
    s_add_u32 s40, s40, s41
    s_bfe_u32 s41, s2, 0x10002
    s_lshl_b32 s41, s41, 3
    s_lshr_b32 s42, s2, 5
    s_add_u32 s41, s41, s42
    v_lshrrev_b32 v1, 6, v0
    v_and_b32 v2, 63, v0
    v_and_b32 v3, 31, v0
    v_readfirstlane_b32 s3, v1
    v_bfe_u32 v4, v0, 5, 1
    v_lshlrev_b32 v5, 4, v2
    v_lshlrev_b32 v6, 4, v3
    v_lshl_add_u32 v6, v4, 15, v6
    s_lshl_b32 s43, s40, 2
    s_add_u32 s43, s43, s3
    s_lshl_b32 s44, s43, 9
    s_mul_i32 s45, s41, 98304
    s_mul_i32 s46, s3, 3072
    s_add_u32 s45, s45, s46
    s_add_u32 s45, s45, {WQP}
    s_add_u32 s47, s44, {XIN}
    s_add_u32 s48, s44, {YC}
    s_add_u32 s49, s44, {X3C}
    s_waitcnt lgkmcnt(0)''')
    e.srd(20, 18, WS_SZ)
    e.stamp()
    if fly:
        e(f's_lshl_b32 s50, s43, 8\ns_add_u32 s50, s50, {ST2}\nv_lshlrev_b32 v7, 3, v3\nv_lshl_add_u32 v7, v4, 17, v7')
        for i in range(8):
            e(f'buffer_load_dwordx2 v[{96+2*i}:{97+2*i}], v7, s[20:23], s50 offen')
            if i < 7: e('s_add_u32 s50, s50, 16384')
    def areg(ks): return (128 + 8*(ks % 16)) if fly else 128+4*ks
    def loads(p):
        l = ['s_mov_b32 m0, s46\nbuffer_load_dwordx4 v5, s[20:23], s45 offen lds', 'buffer_load_dwordx4 v5, s[20:23], s45 offen offset:1024 lds',
             'buffer_load_dwordx4 v5, s[20:23], s45 offen offset:2048 lds\ns_add_u32 s45, s45, 12288\ns_add_u32 s46, s46, 12288']
        if res: l = []
        for ks in range(4*p, 4*p+4):
            r = areg(ks)
            l.append(f'buffer_load_dwordx4 v[{r}:{r+3}], v6, s[20:23], s47 offen\ns_add_u32 s47, s47, 65536')
            if fly: l.append(f'buffer_load_dwordx4 v[{r+4}:{r+7}], v6, s[20:23], s48 offen\ns_add_u32 s48, s48, 65536')
        return l
    per = 11 if fly else 7
    if pre:
        e.srd(24, 4, 0x200000)
        e(f'''s_lshl_b32 s48, s40, 4
        s_add_u32 s48, s48, s41
        s_lshl_b32 s49, s48, 13
        s_lshl_b32 s48, s48, 7
        s_add_u32 s52, s48, {YC}
        s_add_u32 s53, s48, {YC+0x100000}
        s_add_u32 s54, s48, {X1C}
        s_add_u32 s55, s48, {X1C+0x100000}
        v_and_b32 v8, 7, v0
        v_lshrrev_b32 v9, 3, v0
        v_lshlrev_b32 v10, 10, v8
        v_lshl_add_u32 v10, v9, 4, v10
        v_lshlrev_b32 v11, 15, v9
        v_lshl_add_u32 v11, v8, 4, v11
        buffer_load_dwordx4 v[16:19], v10, s[24:27], s49 offen
        buffer_load_dwordx4 v[20:23], v10, s[24:27], s49 offen offset:512
        buffer_load_dwordx4 v[24:27], v11, s[20:23], s52 offen
        buffer_load_dwordx4 v[28:31], v11, s[20:23], s53 offen''')
        for p in range(NE):
            for x in loads(p)[:3]: e(x)
        e(f's_mul_i32 s50, s41, 384\ns_add_u32 s50, s50, {WSUM}\nv_lshlrev_b32 v7, 4, v4')
        m = A()
        for p in range(NE, 8):
            for x in loads(p)[:3]: m(x)
        for i in range(12): m(f'buffer_load_dwordx4 a[{128+4*i}:{131+4*i}], v7, s[20:23], s50 offen offset:{32*i}')
        MID[:] = m.l
        e(f'''s_mov_b32 s53, 0xffff0000
        v_lshlrev_b32 v8, 5, v8
        v_add_u32 v8, 98304, v8
        s_lshl_b32 s48, s3, 3
        v_add_u32 v9, s48, v8
        s_waitcnt vmcnt({3*NE+2})''')
        e.stamp()
        for i in range(8): e(f'v_lshlrev_b32 v{32+2*i}, 16, v{16+i}\nv_and_b32 v{33+2*i}, s53, v{16+i}')
        e('v_pk_add_f32 v[12:13], v[32:33], v[34:35]\nv_pk_mul_f32 v[14:15], v[32:33], v[32:33]')
        for i in range(1, 8):
            if i > 1: e(f'v_pk_add_f32 v[12:13], v[12:13], v[{32+2*i}:{33+2*i}]')
            e(f'v_pk_fma_f32 v[14:15], v[{32+2*i}:{33+2*i}], v[{32+2*i}:{33+2*i}], v[14:15]')
        e('''v_add_f32 v12, v12, v13
        v_add_f32 v13, v14, v15
        v_add_f32_dpp v14, v12, v12 row_ror:8 row_mask:0xf bank_mask:0xf
        v_add_f32_dpp v15, v13, v13 row_ror:8 row_mask:0xf bank_mask:0xf''')
        swap2(e, 14, 15, 'v_add_f32', 12, 13, 16)
        swap2(e, 12, 13, 'v_add_f32', 14, 15)
        e(f'''ds_write_b64 v9, v[14:15]
        s_waitcnt lgkmcnt(0)
        s_barrier
        ds_read_b128 v[64:67], v8
        ds_read_b128 v[68:71], v8 offset:16
        s_waitcnt vmcnt({3*NE})''')
        for i in range(8): e(f'v_lshlrev_b32 v{48+2*i}, 16, v{24+i}\nv_and_b32 v{49+2*i}, s53, v{24+i}')
        e('''s_waitcnt lgkmcnt(0)
        v_pk_add_f32 v[64:65], v[64:65], v[66:67]
        v_pk_add_f32 v[68:69], v[68:69], v[70:71]
        v_pk_add_f32 v[14:15], v[64:65], v[68:69]
        v_mul_f32 v12, 0xbb000000, v14
        v_mul_f32 v15, 0x3b000000, v15
        v_fma_f32 v15, -v12, v12, v15
        v_max_f32 v15, 0, v15
        v_add_f32 v15, 0x3727c5ac, v15
        v_rsq_f32 v14, v15''')
        for i in range(8): e(f'v_pk_add_f32 v[{64+2*i}:{65+2*i}], v[{32+2*i}:{33+2*i}], v[12:13] op_sel_hi:[1,0]')
        for i in range(8): e(f'v_pk_mul_f32 v[{48+2*i}:{49+2*i}], v[{48+2*i}:{49+2*i}], v[14:15] op_sel_hi:[1,0]')
        for i in range(8): e(f'v_pk_fma_f32 v[{32+2*i}:{33+2*i}], v[{64+2*i}:{65+2*i}], v[{48+2*i}:{49+2*i}], v[{32+2*i}:{33+2*i}]')
        for i in range(8): e(f'v_cvt_pk_bf16_f32 v{16+i}, v{32+2*i}, v{33+2*i}')
        e('buffer_store_dwordx4 v[16:19], v11, s[20:23], s54 offen\nbuffer_store_dwordx4 v[20:23], v11, s[20:23], s55 offen')
        e.stamp()
        e.dump('KP')
        e('s_endpgm')
        return e.l, 256, 0
    LA = 2
    for p in range(LA):
        for x in loads(p): e(x)
    e(f'''v_mov_b32 v10, 0
    v_mov_b32 v11, 0
    v_mov_b32 v12, 0
    v_mov_b32 v13, 0
    s_mov_b32 s53, 0xffff0000''')
    e(f'v_lshlrev_b32 v14, 2, v4\nv_sub_u32 v14, v3, v14\nv_mov_b32 v15, 0x3f80\nv_mov_b32 v8, 0x3f800000')
    for s in range(2):
        for q in range(4):
            x = 16*s + 8*(q//2) + 2*(q % 2)
            e(f'v_cmp_eq_u32 vcc, {x}, v14\nv_cndmask_b32 v{112+4*s+q}, 0, v15, vcc\nv_cmp_eq_u32 vcc, {x+1}, v14\nv_cndmask_b32 v{112+4*s+q}, v{112+4*s+q}, v8, vcc')
    if fly:
        e(f's_waitcnt vmcnt({LA*per})')
        for i in range(1, 8): e(f'v_pk_add_f32 v[96:97], v[96:97], v[{96+2*i}:{97+2*i}]')
        swap2(e, 96, 97, 'v_add_f32', 98, 99)
        e('''v_mul_f32 v98, 0x3b000000, v98
        v_mul_f32 v99, 0x3b000000, v99
        v_fma_f32 v99, -v98, v98, v99
        v_max_f32 v99, 0, v99
        v_add_f32 v99, 0x3727c5ac, v99
        v_rsq_f32 v120, v99
        s_nop 0
        v_mul_f32 v122, v98, v120
        v_sub_f32 v122, 0, v122''')
    ACC = [16, 32, 48]
    BF = [64, 76, 88]
    def rdB(ks):
        b = BF[ks % 3]
        for j in range(3): e(f'ds_read_b128 v[{b+4*j}:{b+4*j+3}], v{5 if ks < 16 else 9} offset:{(ks % 16)*3072+1024*j}')
    def conv(ks):
        r = areg(ks); l = []
        for j in range(4):
            t = 100 + 6*(j % 2)
            if fly:
                l += [f'v_lshlrev_b32 v{t}, 16, v{r+j}', f'v_and_b32 v{t+1}, s53, v{r+j}', f'v_lshlrev_b32 v{t+2}, 16, v{r+4+j}', f'v_and_b32 v{t+3}, s53, v{r+4+j}',
                      f'v_fma_f32 v{t+4}, v{t}, v120, v122', f'v_fma_f32 v{t+5}, v{t+1}, v120, v122', f'v_fmac_f32 v{t}, v{t+4}, v{t+2}', f'v_fmac_f32 v{t+1}, v{t+5}, v{t+3}',
                      f'v_cvt_pk_bf16_f32 v{r+j}, v{t}, v{t+1}']
            else:
                l += [f'v_lshlrev_b32 v{t}, 16, v{r+j}', f'v_and_b32 v{t+1}, s53, v{r+j}']
            l += [f'v_add_f32 v10, v10, v{t}', f'v_add_f32 v11, v11, v{t+1}', f'v_fmac_f32 v12, v{t}, v{t}', f'v_fmac_f32 v13, v{t+1}, v{t+1}']
        if fly: l.append(f's_cmp_lg_u32 s41, {ks//2}\ns_cbranch_scc1 {L}_sk{ks}\nbuffer_store_dwordx4 v[{r}:{r+3}], v6, s[20:23], s49 offen ;cond\n{L}_sk{ks}:\ns_add_u32 s49, s49, 65536')
        return l
    e('v_add_u32 v9, 49152, v5')
    e.stamp()
    if res:
        rdB(0); rdB(1)
        for ks in range(32):
            r = areg(ks)
            if ks+2 < 32: rdB(ks+2)
            e(f's_waitcnt vmcnt({min(7, 31-ks)}) lgkmcnt({3*min(2, 31-ks)})')
            if ks in (0, 4, 16, 28): e.stamp()
            b = BF[ks % 3]; cv = conv(ks); n3 = (len(cv)+2)//3
            for j in range(3):
                c = ACC[j]; cin = '0' if ks == 0 else f'v[{c}:{c+15}]'
                e(f'v_mfma_f32_32x32x16_bf16 v[{c}:{c+15}], v[{b+4*j}:{b+4*j+3}], v[{r}:{r+3}], {cin}')
                if j == 0 and ks+8 < 32: e(loads((ks+8)//4)[ks % 4])
                for x in cv[j*n3:(j+1)*n3]: e(x)
    for p in range(0 if res else 8):
        cnt = per*min(LA-1, 7-p) + (12 if p < 3 else 0)
        e(f's_waitcnt vmcnt({cnt})\ns_barrier')
        if p in (0, 1, 4, 7): e.stamp()
        rdB(4*p); rdB(4*p+1)
        ld = loads(p+LA) if p+LA < 8 else []
        if fly:
            for x in conv(4*p): e(x)
        for ks in range(4*p, 4*p+4):
            r = areg(ks)
            if ks+2 < 4*p+4: rdB(ks+2)
            rem = min(2, 4*p+3-ks)
            e(f's_waitcnt lgkmcnt({3*rem})')
            b = BF[ks % 3]
            cv = (conv(ks+1) if ks+1 < 4*p+4 else []) if fly else conv(ks)
            n3 = (len(cv)+2)//3
            for j in range(3):
                c = ACC[j]; cin = '0' if ks == 0 else f'v[{c}:{c+15}]'
                e(f'v_mfma_f32_32x32x16_bf16 v[{c}:{c+15}], v[{b+4*j}:{b+4*j+3}], v[{r}:{r+3}], {cin}')
                if ld and (fly or j != 1 or len(ld) == per): e(ld.pop(0))
                for x in cv[j*n3:(j+1)*n3]: e(x)
        assert not ld
    return e, L, fly
def K2full(layer):
    e, L, fly = K2(layer)
    e.stamp()
    if layer == 0:
        e(f's_bfe_u32 s54, s2, 0x20003\ns_lshl_b32 s54, s54, 2\ns_add_u32 s54, s54, s3\ns_lshl_b32 s54, s54, 15\ns_add_u32 s54, s54, {WOP}')
    for i in range(48):
        e(f'v_accvgpr_read_b32 v{128+i}, a{128+i}')
    if layer == 0:
        for j in range(8): e(f's_add_u32 s{4+j}, s54, {4096*j}')
    wo_at = len(e.l)
    e('v_add_f32 v10, v10, v11\nv_add_f32 v12, v12, v13')
    swap2(e, 10, 12, 'v_add_f32', 64, 66)
    e('''v_mul_f32 v64, 0xbb000000, v64
    v_mul_f32 v66, 0x3b000000, v66
    v_fma_f32 v66, -v64, v64, v66
    v_max_f32 v66, 0, v66
    v_add_f32 v66, 0x3727c5ac, v66
    v_rsq_f32 v66, v66
    v_mul_f32 v68, 0x3fb8aa3b, v66''')
    e.stamp()
    for t in (2, 1, 0):
        for i in range(8):
            c = 16+16*t+2*i; w = 128+16*t+2*i
            e(f'v_pk_fma_f32 v[{c}:{c+1}], v[{w}:{w+1}], v[64:65], v[{c}:{c+1}] op_sel_hi:[1,0,1]')
    for i in range(8): e(f'v_pk_mul_f32 v[{48+2*i}:{49+2*i}], v[{48+2*i}:{49+2*i}], v[66:67] op_sel_hi:[1,0]')
    for i in range(8): e(f'v_cvt_pk_bf16_f32 v{128+i}, v{48+2*i}, v{49+2*i}')
    e('v_mfma_f32_32x32x16_bf16 v[176:191], v[128:131], v[112:115], 0\nv_mfma_f32_32x32x16_bf16 v[176:191], v[132:135], v[116:119], v[176:191]')
    def softmax(c, out):
        e(f'''v_max3_f32 v70, v{c}, v{c+1}, v{c+2}
        v_max3_f32 v71, -v{c}, -v{c+1}, -v{c+2}
        v_max3_f32 v70, v70, v{c+3}, v{c+4}
        v_max3_f32 v71, v71, -v{c+3}, -v{c+4}
        v_max3_f32 v70, v70, v{c+5}, v{c+6}
        v_max3_f32 v71, v71, -v{c+5}, -v{c+6}
        v_max_f32 v70, v70, v{c+7}
        v_max_f32_e64 v71, v71, -v{c+7}''')
        swap2(e, 70, 71, 'v_max_f32', 72, 74)
        e('v_mul_f32_e64 v72, -v72, v68\nv_mul_f32_e64 v74, -v74, v68')
        for i in range(4):
            e(f'v_pk_fma_f32 v[{76+2*i}:{77+2*i}], v[{c+2*i}:{c+2*i+1}], v[68:69], v[72:73] op_sel_hi:[1,0,0]')
            e(f'v_pk_fma_f32 v[{84+2*i}:{85+2*i}], v[{c+2*i}:{c+2*i+1}], v[68:69], v[74:75] op_sel_hi:[1,0,0] neg_lo:[1,0,0] neg_hi:[1,0,0]')
        for i in range(16): e(f'v_exp_f32 v{76+i}, v{76+i}')
        e('''v_pk_add_f32 v[92:93], v[76:77], v[78:79]
        v_pk_add_f32 v[94:95], v[84:85], v[86:87]
        v_pk_add_f32 v[92:93], v[92:93], v[80:81]
        v_pk_add_f32 v[94:95], v[94:95], v[88:89]
        v_pk_add_f32 v[92:93], v[92:93], v[82:83]
        v_pk_add_f32 v[94:95], v[94:95], v[90:91]
        v_add_f32 v70, v92, v93
        v_add_f32 v71, v94, v95''')
        swap2(e, 70, 71, 'v_add_f32', 72, 74)
        e('v_rcp_f32 v72, v72\nv_rcp_f32 v74, v74')
        for i in range(8): e(f'v_pk_mul_f32 v[{76+2*i}:{77+2*i}], v[{76+2*i}:{77+2*i}], v[{72 if i < 4 else 74}:{73 if i < 4 else 75}] op_sel_hi:[1,0]')
        for i in range(8): e(f'v_cvt_pk_bf16_f32 v{out+i}, v{76+2*i}, v{77+2*i}')
    for h in range(2):
        softmax(32+8*h, 136+8*h)
        t = 200+16*h
        e(f'v_mfma_f32_32x32x16_bf16 v[{t}:{t+15}], v[{136+8*h}:{139+8*h}], v[112:115], 0\nv_mfma_f32_32x32x16_bf16 v[{t}:{t+15}], v[{140+8*h}:{143+8*h}], v[116:119], v[{t}:{t+15}]')
        if h == 0:
            e('v_cmp_gt_u32 vcc, 16, v3\nv_mov_b32 v96, 0x3f803f80')
            for i in range(8): e(f'v_cvt_pk_bf16_f32 v{192+i}, v{176+2*i}, v{177+2*i}')
            for i in range(8): e(f'v_cndmask_b32 v{152+i}, v96, v{192+i}, vcc\nv_cndmask_b32 v{160+i}, v{192+i}, v96, vcc')
    e(f's_lshl_b32 s50, s41, 18\ns_lshl_b32 s51, s43, 11\ns_add_u32 s50, s50, s51\ns_add_u32 s50, s50, {PQ1 if layer else PQ}\ns_add_u32 s51, s50, 131072')
    softmax(16, 100)
    e('buffer_store_dwordx4 v[100:103], v5, s[20:23], s50 offen\nbuffer_store_dwordx4 v[104:107], v5, s[20:23], s50 offen offset:1024')
    for h in range(2):
        t = 200+16*h
        for i in range(8): e(f'v_cvt_pk_bf16_f32 v{168+i}, v{t+2*i}, v{t+2*i+1}'.replace('v168', 'v168') if h == 0 else f'v_cvt_pk_bf16_f32 v{232+i}, v{t+2*i}, v{t+2*i+1}')
        A_ = 168 if h == 0 else 232; c = 176 if h == 0 else 32
        e(f'v_mfma_f32_32x32x16_bf16 v[{c}:{c+15}], v[{A_}:{A_+3}], v[{152+8*h}:{155+8*h}], 0\nv_mfma_f32_32x32x16_bf16 v[{c}:{c+15}], v[{A_+4}:{A_+7}], v[{156+8*h}:{159+8*h}], v[{c}:{c+15}]')
    e.stamp()
    if layer == 0:
        seg = e.l[wo_at:]; del e.l[wo_at:]
        st = len(seg) // 32
        for i in range(32):
            e(f'buffer_load_dwordx4 a[{4*i}:{4*i+3}], v5, s[20:23], s{4+i//4} offen offset:{1024*(i%4)}')
            e.l += seg[i*st:(i+1)*st] if i < 31 else seg[i*st:]
    e(f'''v_mul_u32_u24 v96, 272, v4
    s_mul_i32 s50, s3, 4352
    s_add_u32 s50, s50, 98304
    v_add_u32 v96, s50, v96
    v_min_u32 v97, 16, v3
    v_lshl_add_u32 v97, v97, 4, v96
    v_xor_b32 v98, 16, v3
    v_min_u32 v98, 16, v98
    v_lshl_add_u32 v98, v98, 4, v96''')
    for g in range(4): e(f'ds_write_b128 v97, v[{176+4*g}:{179+4*g}] offset:{g*544}')
    for g in range(4): e(f'ds_write_b128 v98, v[{32+4*g}:{35+4*g}] offset:{2176+g*544}')
    e(f'''v_lshlrev_b32 v96, 2, v0
    v_add_u32 v97, 98304, v96
    s_mul_i32 s50, s41, 4352
    s_add_u32 s50, s50, {STATE+layer*STATE_L}
    s_waitcnt lgkmcnt(0)
    s_barrier''')
    e.stamp()
    for i in range(5):
        for w in range(4): e(f'ds_read_b32 v{100+4*i+w}, v97 offset:{1024*i+4352*w}')
        if i in (2, 4): e('s_waitcnt lgkmcnt(0)')
    for i in range(5): e(f'v_add_f32 v{100+4*i}, v{100+4*i}, v{101+4*i}\nv_add_f32 v{102+4*i}, v{102+4*i}, v{103+4*i}\nv_add_f32 v{100+4*i}, v{100+4*i}, v{102+4*i}')
    for i in range(4): e(f'buffer_atomic_add_f32 v{100+4*i}, v96, s[20:23], s50 offen offset:{1024*i}')
    e(f'''s_cmp_lg_u32 s3, 0
    s_cbranch_scc1 {L}_na
    s_add_u32 s50, s50, 4096 ;cond
    buffer_atomic_add_f32 v116, v96, s[20:23], s50 offen ;cond
    {L}_na:''')
    softmax(24, 128)
    e('buffer_store_dwordx4 v[128:131], v5, s[20:23], s51 offen\nbuffer_store_dwordx4 v[132:135], v5, s[20:23], s51 offen offset:1024')
    e.stamp()
    if os.environ.get('STAMP'): e('s_waitcnt vmcnt(0)')
    e.dump(L)
    e(f'{L}_end:\ns_endpgm')
    return e.l, 256, 0

def K3(layer):
    L = f'K3{layer}'; last = layer == 1
    e = A()
    e(f'''s_cmp_ge_u32 s2, 256
    s_cbranch_scc1 {L}_end
    s_load_dwordx2 s[18:19], s[0:1], 96
    s_load_dwordx2 s[16:17], s[0:1], 80
    s_and_b32 s40, s2, 7
    s_lshl_b32 s40, s40, 3
    s_lshr_b32 s41, s2, 5
    s_add_u32 s40, s40, s41
    s_bfe_u32 s41, s2, 0x20003
    v_lshrrev_b32 v1, 6, v0
    v_and_b32 v2, 63, v0
    v_and_b32 v3, 31, v0
    v_readfirstlane_b32 s3, v1
    v_bfe_u32 v4, v0, 5, 1
    v_lshlrev_b32 v5, 4, v2
    v_min_u32 v6, 16, v3
    v_lshlrev_b32 v6, 4, v6
    v_mul_u32_u24 v7, 272, v4
    v_add_u32 v6, v6, v7
    s_mul_i32 s42, s3, {8*2176}
    s_add_u32 s42, s42, {STATE+layer*STATE_L}
    s_lshl_b32 s43, s3, 20
    s_lshl_b32 s44, s40, 11
    s_add_u32 s43, s43, s44
    s_add_u32 s43, s43, {PQ1 if layer else PQ}
    s_lshl_b32 s44, s41, 2
    s_add_u32 s44, s44, s3
    s_lshl_b32 s45, s44, 15
    s_add_u32 s45, s45, {WOP}
    s_waitcnt lgkmcnt(0)''')
    e.srd(20, 18, WS_SZ)
    e.stamp()
    for h in range(8):
        for s in range(2): e(f'buffer_load_dwordx4 v[{192+8*h+4*s}:{195+8*h+4*s}], v5, s[20:23], s43 offen offset:{1024*s}')
        if h < 7: e('s_add_u32 s43, s43, 131072')
    def wo(k0, k1):
        for ks in range(k0, k1):
            e(f'buffer_load_dwordx4 a[{4*ks}:{4*ks+3}], v5, s[20:23], s45 offen offset:{1024*(ks%4)}')
            if ks % 4 == 3: e('s_add_u32 s45, s45, 4096')
    e(f'''s_lshl_b32 s46, s44, 17
    s_lshl_b32 s47, s40, 9
    s_add_u32 s46, s46, s47
    s_add_u32 s47, s46, {X3C if last else X1C}
    s_add_u32 s49, s46, {YC}
    s_add_u32 s46, s46, {X3C}
    v_lshlrev_b32 v8, 4, v3
    v_lshl_add_u32 v9, v4, 3, v8
    v_lshl_add_u32 v8, v4, 15, v8
    s_lshl_b32 s48, s3, 13
    v_add_u32 v11, 98304, v5
    v_add_u32 v10, s48, v11''')
    for g in range(4): e(f'buffer_load_dwordx2 v[{48+2*g}:{49+2*g}], v9, s[20:23], s47 offen\ns_add_u32 s47, s47, 32768')
    if not last:
        for g in range(4): e(f'buffer_load_dwordx2 a[{176+2*g}:{177+2*g}], v9, s[20:23], s49 offen\ns_add_u32 s49, s49, 32768')
    e('@BAR2')
    e.stamp()
    def sl(h):
        for g in range(4): e(f'buffer_load_dwordx4 v[{64+16*h+4*g}:{67+16*h+4*g}], v6, s[20:23], s42 offen offset:{544*g}')
        if h < 7: e('s_add_u32 s42, s42, 2176')
    SLA = 4
    for h in range(SLA): sl(h)
    e.stamp()
    extra = {}
    issued = 32
    def fin(h):
        c = 16+16*(h % 2)
        e(f'v_add_f32 v12, 0x358637bd, v{c+8}\nv_rcp_f32 v12, v12')
        for i in range(4): e(f'v_pk_mul_f32 v[{c+2*i}:{c+2*i+1}], v[{c+2*i}:{c+2*i+1}], v[12:13] op_sel_hi:[1,0]')
        for i in range(4): e(f'v_cvt_pk_bf16_f32 v{56+4*(h%2)+i}, v{c+2*i}, v{c+2*i+1}')
        e(f'ds_write_b128 v10, v[{56+4*(h%2)}:{59+4*(h%2)}] offset:{1024*h}')
    for h in range(8):
        e(f's_waitcnt vmcnt({4*(min(h+SLA-1, 7)-h)})')
        if h in (0,4): e.stamp()
        b = 64+16*h
        for i in range(8): e(f'v_cvt_pk_bf16_f32 v{b+i}, v{b+2*i}, v{b+2*i+1}')
        c = 16+16*(h % 2)
        e(f'v_mfma_f32_32x32x16_bf16 v[{c}:{c+15}], v[{b}:{b+3}], v[{192+8*h}:{195+8*h}], 0\nv_mfma_f32_32x32x16_bf16 v[{c}:{c+15}], v[{b+4}:{b+7}], v[{196+8*h}:{199+8*h}], v[{c}:{c+15}]')
        if h in extra: wo(*extra[h]); issued += extra[h][1]-extra[h][0]
        if h+SLA < 8: sl(h+SLA)
        if h > 0: fin(h-1)
    fin(7)
    e.stamp()
    e('s_waitcnt lgkmcnt(0)\ns_barrier')
    e.stamp()
    PD = 6
    def rd(ks): e(f'ds_read_b128 v[{64+4*(ks%PD)}:{67+4*(ks%PD)}], v11 offset:{1024*ks}')
    for ks in range(PD-1): rd(ks)
    for ks in range(32):
        if ks+PD-1 < 32: rd(ks+PD-1)
        w = f's_waitcnt lgkmcnt({min(PD-1, 31-ks)})'
        e(w)
        e(f'v_mfma_f32_32x32x16_bf16 v[16:31], a[{4*ks}:{4*ks+3}], v[{64+4*(ks%PD)}:{67+4*(ks%PD)}], {"0" if ks == 0 else "v[16:31]"}')
    e.stamp()
    e('s_mov_b32 s53, 0xffff0000\ns_mov_b32 s52, 0x3f803f80\ns_waitcnt vmcnt(0)')
    for i in range(8): e(f'v_lshlrev_b32 v{32+2*i}, 16, v{48+i}\nv_and_b32 v{33+2*i}, s53, v{48+i}')
    for i in range(8): e(f'v_pk_add_f32 v[{16+2*i}:{17+2*i}], v[{16+2*i}:{17+2*i}], v[{32+2*i}:{33+2*i}]')
    for i in range(8): e(f'v_cvt_pk_bf16_f32 v{32+i}, v{16+2*i}, v{17+2*i}')
    if not last:
        e('v_mov_b32 v12, 0\nv_mov_b32 v13, 0')
        for i in range(8): e(f'v_dot2c_f32_bf16 v12, s52, v{32+i}\nv_dot2c_f32_bf16 v13, v{32+i}, v{32+i}')
        e(f'''v_lshlrev_b32 v6, 5, v3
        s_lshl_b32 s48, s3, 3
        v_add_u32 v11, 98304, v6
        v_add_u32 v7, s48, v11
        s_lshl_b32 s47, s40, 10
        s_add_u32 s47, s47, {ST2}
        s_lshl_b32 s48, s41, 3
        s_add_u32 s50, s47, s48''')
        swap2(e, 12, 13, 'v_add_f32', 14, 15)
        e('''ds_write_b64 v7, v[14:15] offset:32768
        s_waitcnt lgkmcnt(0)
        s_barrier
        ds_read_b128 v[40:43], v11 offset:32768
        ds_read_b128 v[44:47], v11 offset:32784
        v_lshl_add_u32 v7, v4, 4, v6
        s_mov_b32 s48, 0
        s_waitcnt lgkmcnt(0)
        v_pk_add_f32 v[40:41], v[40:41], v[42:43]
        v_pk_add_f32 v[44:45], v[44:45], v[46:47]
        v_pk_add_f32 v[14:15], v[40:41], v[44:45]
        v_or_b32 v14, 1, v14
        v_or_b32 v15, 1, v15
        s_cmp_lg_u32 s3, 0
        s_cbranch_scc1 K3x_skip
        buffer_store_dwordx2 v[14:15], v6, s[20:23], s50 offen sc0 sc1 ;cond
        K3x_skip:''')
        e.stamp()
        for i in range(8): e(f'v_lshlrev_b32 v{16+2*i}, 16, v{32+i}\nv_and_b32 v{17+2*i}, s53, v{32+i}')
        for i in range(8): e(f'v_accvgpr_read_b32 v{88+i}, a{176+i}')
        for i in range(8): e(f'v_lshlrev_b32 v{64+2*i}, 16, v{88+i}\nv_and_b32 v{65+2*i}, s53, v{88+i}')
        for i in range(8): e(f'v_pk_mul_f32 v[{96+2*i}:{97+2*i}], v[{16+2*i}:{17+2*i}], v[{64+2*i}:{65+2*i}]')
        e('''K3x_poll:
        buffer_load_dwordx4 v[40:43], v7, s[20:23], s47 offen sc0 sc1
        s_add_u32 s48, s48, 1
        s_waitcnt vmcnt(0)
        v_min_u32 v44, v40, v41
        v_min3_u32 v44, v42, v43, v44
        v_cmp_eq_u32 vcc, 0, v44
        s_cbranch_vccz K3x_done
        s_cmp_lt_u32 s48, 0x20000
        s_cbranch_scc1 K3x_poll
        K3x_done:
        v_pk_add_f32 v[12:13], v[40:41], v[42:43]''')
        e.stamp()
        swap2(e, 12, 13, 'v_add_f32', 14, 15)
        e('''v_mul_f32 v12, 0xbb000000, v14
        v_mul_f32 v15, 0x3b000000, v15
        v_fma_f32 v15, -v12, v12, v15
        v_max_f32 v15, 0, v15
        v_add_f32 v15, 0x3727c5ac, v15
        v_rsq_f32 v14, v15''')
        for i in range(8): e(f'v_pk_fma_f32 v[{96+2*i}:{97+2*i}], v[{64+2*i}:{65+2*i}], v[12:13], v[{96+2*i}:{97+2*i}] op_sel_hi:[1,0,1]')
        for i in range(8): e(f'v_pk_fma_f32 v[{16+2*i}:{17+2*i}], v[{96+2*i}:{97+2*i}], v[14:15], v[{16+2*i}:{17+2*i}] op_sel_hi:[1,0,1]')
        for i in range(8): e(f'v_cvt_pk_bf16_f32 v{32+i}, v{16+2*i}, v{17+2*i}')
    e('v_permlane32_swap_b32 v32, v34\nv_permlane32_swap_b32 v33, v35\nv_permlane32_swap_b32 v36, v38\nv_permlane32_swap_b32 v37, v39')
    if last:
        e.srd(24, 16, 0x200000)
        e(f'''s_lshl_b32 s46, s40, 15
        s_lshl_b32 s47, s44, 6
        s_add_u32 s46, s46, s47
        v_lshlrev_b32 v8, 10, v3
        v_lshl_add_u32 v8, v4, 4, v8
        buffer_store_dwordx4 v[32:35], v8, s[24:27], s46 offen
        buffer_store_dwordx4 v[36:39], v8, s[24:27], s46 offen offset:32''')
    else:
        e(f'''buffer_store_dwordx4 v[32:35], v8, s[20:23], s46 offen
        s_add_u32 s46, s46, 65536
        buffer_store_dwordx4 v[36:39], v8, s[20:23], s46 offen''')
    e.stamp()
    if os.environ.get('STAMP'): e('s_waitcnt vmcnt(0)')
    e.dump(L)
    e(f'{L}_end:\ns_endpgm')
    return e.l, 256, 128
```

```python
import sys
from asmlib import *
from k01 import *
from k23 import *
NAME='interleave_layers__ssm_conv_h3__linear_kernel_hedgehog__prompt'
hdr = [l for l in open(f'cdna_kernels/{NAME}.s.ref').read().split('\n') if l.startswith(';') and '@launch' not in l]
import os, re
INV = os.environ.get('INV', '1') == '1'
def poll(e, lab, va='v2', vd='v4', sa='s41', sc='s42', cmp='v_cmp_ne_u32 vcc, 1'):
    e(f"""s_mov_b32 {sc}, 0
    {lab}:
    buffer_load_dword {vd}, {va}, s[20:23], {sa} offen sc0 sc1
    s_add_u32 {sc}, {sc}, 1
    s_waitcnt vmcnt(0)
    {cmp}, {vd}
    s_cbranch_vccz {lab}d
    s_cmp_lt_u32 {sc}, 0x20000
    s_cbranch_scc1 {lab}
    {lab}d:""")
def bar(b, local):
    e = A()
    pre = b == 3
    o = FLG + 16384*(1 if pre else b); o2 = FLG + 49152 + 2048*b
    e(f"""s_waitcnt vmcnt(0) lgkmcnt(0)
    s_barrier
    s_cmp_lg_u32 s3, 0
    s_cbranch_scc1 BAR{b}_{'m' if pre else 'w'}
    v_mov_b32 v1, {2 if b == 1 else 1}
    v_lshlrev_b32 v2, 6, v0
    v_lshlrev_b32 v3, 10, v0
    s_lshl_b32 s40, s40, {8 if b == 1 else 10}
    s_lshl_b32 s41, s41, 6
    s_add_u32 s40, s40, s41
    s_add_u32 s40, s40, {o}""")
    if local:
        e(f"s_and_b32 s43, s2, 3\ns_lshl_b32 s43, s43, 2\ns_bfe_u32 s42, s2, 0x20003")
    else:
        e(f"s_and_b32 s43, s2, 7\ns_lshl_b32 s43, s43, 1\ns_lshr_b32 s42, s2, 7")
    e(f"""s_add_u32 s43, s43, s42
    s_lshl_b32 s41, s43, 10
    s_add_u32 s41, s41, {o}
    s_mov_b64 exec, 1
    buffer_store_dword v1, v2, s[20:23], s40 offen sc0 sc1
    s_mov_b64 exec, 0xffff""")
    if pre:
        e(f's_mov_b64 exec, -1\nBAR{b}_m:'); e.l += MID
        e(f's_cmp_lg_u32 s3, 0\ns_cbranch_scc1 BAR{b}_w\ns_mov_b64 exec, 0xffff')
    poll(e, f'BAR{b}_p', cmp='v_cmp_eq_u32 vcc, 0' if pre else 'v_cmp_ne_u32 vcc, 2' if local else 'v_cmp_ne_u32 vcc, 1')
    if not local:
        e(f"""s_bfe_u32 s42, s2, 0x40003
        s_cmp_lg_u32 s42, 0
        s_cbranch_scc1 BAR{b}_n
        s_lshl_b32 s40, s43, 6
        s_add_u32 s40, s40, {o2}
        s_mov_b64 exec, 15
        buffer_store_dword v1, v3, s[20:23], s40 offen sc0 sc1
        BAR{b}_n:""")
    e(f"s_mov_b64 exec, -1\nBAR{b}_w:\n{'s_waitcnt vmcnt(0)' if pre else ''}\ns_barrier")
    return e.l
def bar2(b):
    e = A()
    o2 = FLG + 49152 + 2048*b
    e(f"""s_cmp_lg_u32 s3, 0
    s_cbranch_scc1 BAR{b}_x
    v_lshlrev_b32 v14, 6, v0
    s_bfe_u32 s55, s2, 0x20003
    s_lshl_b32 s55, s55, 10
    s_add_u32 s55, s55, {o2}
    s_mov_b64 exec, 0xffff""")
    poll(e, f'BAR{b}_q', 'v14', 'v15', 's55', 's51')
    e(f"s_mov_b64 exec, -1\nBAR{b}_x:\ns_barrier")
    return e.l
def wt(l):
    t = l.split(';')[0].rstrip(); c = l[len(t):]
    if 's[56:59]' in t or 'sc1' in t: return l
    if t.strip().startswith('buffer_store'): return t + ' sc0 sc1' + c
    if t.strip().startswith('buffer_atomic'): return t + ' sc1' + c
    return l
k0 = K0(); k1 = K1()
ph = [K2(0, True), K2full(0), K3(0), K2full(1), K3(1)]
body = []
for i, (l, nv, na) in enumerate(ph):
    assert 's_cmp_ge_u32 s2, 256' in l[0] and 's_endpgm' in l[-1], (l[0], l[-1])
    if i == 0: l = [l[0], 's_cbranch_scc1 K31_end', 's_load_dwordx2 s[16:17], s[0:1], 80', 's_load_dwordx2 s[4:5], s[0:1], 0'] + l[2:]
    else: l = [x for x in l[2:] if not re.match(r'\s*s_load_dwordx2 s\[1[68]:', x)]
    if i < 4: l = [wt(x) for x in l[:-1]] + (bar(i-1, i == 2) if i else bar(3, True))
    for x in l: body += bar2(i-2) if x.strip() == '@BAR2' else [x]
ks = [('k0_kernel', k0, 320, 16384), ('k1_kernel', k1, 256, K1_LDS), ('kf_kernel', (body, 256, 184), 256, 132096)]
n = int(sys.argv[2]) if len(sys.argv) > 2 else len(ks)
out = hdr + [f'; @launch kernel={k} grid=({g},1,1) block=(256,1,1) lds={l}' for k, _, g, l in ks[:n]]
out += ['.amdgcn_target "amdgcn-amd-amdhsa--gfx950"', '.text']
for k, (body, nv, na), g, l in ks:
    out += [f'.globl {k}', '.p2align 8', f'.type {k},@function', f'{k}:'] + fix_hazards(body)
out += ['.section .rodata,"a"']
for k, (body, nv, na), g, l in ks:
    out += ['.p2align 6', f'.amdhsa_kernel {k}', f'  .amdhsa_next_free_vgpr {nv+na}', '  .amdhsa_next_free_sgpr 100', f'  .amdhsa_accum_offset {nv}',
            '  .amdhsa_group_segment_fixed_size 0', '  .amdhsa_kernarg_size 104', '  .amdhsa_user_sgpr_count 2', '  .amdhsa_user_sgpr_kernarg_segment_ptr 1',
            '  .amdhsa_system_sgpr_workgroup_id_x 1', '.end_amdhsa_kernel']
open(sys.argv[1] if len(sys.argv) > 1 else f'cdna_kernels/{NAME}.s', 'w').write('\n'.join(out)+'\n')
```
